```python
import torch

def _softmax(x, axis=-1):
    return torch.softmax(x, dim=axis)
def _gelu(x):
    return torch.nn.functional.gelu(x, approximate="tanh")
def _silu(x):
    return torch.nn.functional.silu(x)
def _sigmoid(x):
    return torch.sigmoid(x)
def _layernorm(x, axis=-1, eps=1e-5):
    m = x.mean(dim=axis, keepdim=True)
    v = x.var(dim=axis, keepdim=True, unbiased=False)
    return (x - m) / torch.sqrt(v + eps)
def _scatter_add(tgt, idx, src, axis=0):
    return tgt.clone().index_add_(axis, idx, src)
def _segment_sum(src, seg, n):
    out = torch.zeros((n,) + src.shape[1:], dtype=src.dtype)
    return out.index_add_(0, seg, src)
def _pad(x, pw):
    flat = tuple(v for pair in reversed(pw) for v in pair)
    return torch.nn.functional.pad(x, flat)

kernel_name = 'sequential_preLN__sliding_local_dilated__glu_gated_swiglu__prompt'

def setup_inputs():

    _w = (lambda a: (lambda t: t.to(torch.bfloat16) if t.is_floating_point() else t)(torch.as_tensor(a)))
    def _A_setup():
        B, S, D = 1, 2048, 640
        return {
            "x": _w((lambda *s: torch.randn(*s, dtype=torch.bfloat16) * 0.05)(B, S, D)),
            "wqkv": _w((lambda *s: torch.randn(*s, dtype=torch.bfloat16) * 0.05)(D, 3 * D)),
            "wo": _w((lambda *s: torch.randn(*s, dtype=torch.bfloat16) * 0.05)(D, D)),
        }
    _A_in = _A_setup()

    def _B_setup():
        B, S, D, F = 1, 2048, 640, 1536
        return {
            "x": _w((lambda *s: torch.randn(*s, dtype=torch.bfloat16) * 0.05)(B, S, D)),
            "w1": _w((lambda *s: torch.randn(*s, dtype=torch.bfloat16) * 0.8)(D, F) * (2.0 / D) ** 0.5),
            "w3": _w((lambda *s: torch.randn(*s, dtype=torch.bfloat16) * 0.8)(D, F) * (2.0 / D) ** 0.5),
            "w2": _w((lambda *s: torch.randn(*s, dtype=torch.bfloat16) * 0.8)(F, D) * (2.0 / F) ** 0.5),
        }
    _B_in = _B_setup()

    return {
        "A_x": _A_in["x"],
        "A_wqkv": _A_in["wqkv"],
        "A_wo": _A_in["wo"],
        "B_x": _B_in["x"],
        "B_w1": _B_in["w1"],
        "B_w3": _B_in["w3"],
        "B_w2": _B_in["w2"],
    }

def reference(A_x, A_wqkv, A_wo, B_x, B_w1, B_w3, B_w2):
    def _A_ref(x, wqkv, wo):
        B, S, D = x.shape
        H = 32; Dh = D // H
        W, dil = 8, 2
        qkv = (lambda x, *d: x.permute(*d))((x @ wqkv).reshape(B, S, 3, H, Dh), 2, 0, 3, 1, 4)
        q, k, v = qkv[0], qkv[1], qkv[2]
        scale = Dh ** -0.5
        pos = torch.arange(S)
        off = torch.arange(W) * dil
        idx = pos[:, None] - off[None, :]
        mask = idx >= 0
        idx_c = torch.where(mask, idx, 0).reshape(-1)
        kg = k[:, :, idx_c, :].reshape(B, H, S, W, Dh)
        vg = v[:, :, idx_c, :].reshape(B, H, S, W, Dh)
        logits = torch.einsum("bhsd,bhswd->bhsw", q, kg) * scale
        logits = torch.where(mask[None, None, :, :], logits, -1e9)
        attn = _softmax(logits, axis=-1)
        o = torch.einsum("bhsw,bhswd->bhsd", attn, vg)
        return (lambda x, *d: x.permute(*d))(o, 0, 2, 1, 3).reshape(B, S, D) @ wo

    def _B_ref(x, w1, w3, w2):
        gate = torch.einsum("bsd,df->bsf", x, w1)
        up = torch.einsum("bsd,df->bsf", x, w3)
        h = _silu(gate) * up
        out = torch.einsum("bsf,fd->bsd", h, w2)
        return out

    x = A_x
    h = x + _A_ref(_layernorm(x, axis=-1), A_wqkv, A_wo)
    h2 = h + _B_ref(_layernorm(h, axis=-1), B_w1, B_w3, B_w2)
    return h2
```

```python
import re

TRANS = ("v_exp_f32", "v_log_f32", "v_rcp_f32", "v_rsq_f32", "v_sqrt_f32", "v_sin_f32", "v_cos_f32")
REG_RE = re.compile(r"^(-?)(?:abs\()?([vsa])(?:(\d+)|\[(\d+):(\d+)\])\)?$")


def regs_of(op):
    op = op.strip()
    if op in ("vcc", "vcc_lo", "vcc_hi"):
        return {("s", "vcc")}
    if op in ("exec", "exec_lo", "exec_hi"):
        return {("s", "exec")}
    if op == "m0":
        return {("s", "m0")}
    m = REG_RE.match(op)
    if not m:
        return set()
    k = m.group(2)
    if m.group(3) is not None:
        return {(k, int(m.group(3)))}
    return {(k, i) for i in range(int(m.group(4)), int(m.group(5)) + 1)}


class Ins:
    __slots__ = ("text", "op", "cls", "rd", "wr", "srcc", "ab", "passes", "dpp", "target", "states", "islabel", "lds")

    def __init__(self, text):
        self.text = text
        self.islabel = text.endswith(":")
        self.rd, self.wr, self.srcc, self.ab = set(), set(), set(), set()
        self.passes = 0
        self.dpp = False
        self.lds = False
        self.target = None
        self.states = 1
        if self.islabel or text.startswith("."):
            self.op, self.cls, self.states = "", "label" if self.islabel else "dir", 0
            return
        parts = text.split(None, 1)
        op = parts[0]
        self.op = op
        rest = parts[1] if len(parts) > 1 else ""
        ops, depth, cur = [], 0, ""
        for ch in rest:
            if ch in "[(":
                depth += 1
            if ch in "])":
                depth -= 1
            if ch == "," and depth == 0:
                ops.append(cur.strip())
                cur = ""
            else:
                cur += ch
        if cur.strip():
            ops.append(cur.strip())
        mods = ""
        if ops:
            last = ops[-1].split(None, 1)
            ops[-1] = last[0]
            mods = last[1] if len(last) > 1 else ""
        R = [regs_of(o) for o in ops]
        U = lambda xs: set().union(*xs) if xs else set()
        if op.startswith("v_mfma") or op.startswith("v_smfmac"):
            self.cls = "mfma"
            self.passes = 8 if "32x32" in op else 4
            self.wr = R[0]
            self.ab = R[1] | R[2]
            self.srcc = R[3] if op.startswith("v_mfma") else R[0]
            self.rd = self.ab | self.srcc | R[3]
        elif op.startswith("v_"):
            self.cls = "valu"
            self.dpp = "_dpp" in op
            if op.startswith("v_cmp"):
                self.wr, self.rd = R[0], U(R[1:])
            elif op.startswith("v_permlane") or op.startswith("v_swap"):
                self.wr = self.rd = R[0] | R[1]
            elif op.startswith("v_add_co") or op.startswith("v_addc_co") or op.startswith("v_sub_co"):
                self.wr, self.rd = R[0] | R[1], U(R[2:])
            else:
                self.wr, self.rd = R[0], U(R[1:])
                if op.startswith("v_fmac") or op.startswith("v_dot2c") or op.startswith("v_writelane") or self.dpp:
                    self.rd = self.rd | R[0]
                if op.startswith("v_dot2c"):
                    self.srcc = R[0]
                    self.ab = U(R[1:])
        elif op.startswith("ds_"):
            self.cls = "ds"
            if op.startswith("ds_read") or op.startswith("ds_bpermute") or op.startswith("ds_swizzle"):
                self.wr, self.rd = R[0], U(R[1:])
            else:
                self.rd = U(R)
        elif op.startswith("buffer_") or op.startswith("global_"):
            self.cls = "vmem"
            self.lds = " lds" in (" " + mods)
            if "load" in op and not self.lds:
                self.wr, self.rd = R[0], U(R[1:])
            else:
                self.rd = U(R)
                if self.lds:
                    self.rd = self.rd | {("s", "m0")}
                if op.endswith("x4") and "store" in op:
                    self.srcc = R[0] if op.startswith("buffer_") else R[1]
        elif op.startswith("s_"):
            self.cls = "salu"
            if op == "s_nop":
                self.states = int(ops[0], 0) + 1
            elif op.startswith("s_cbranch") or op == "s_branch":
                self.cls = "branch"
                self.target = ops[0]
            elif op in ("s_waitcnt", "s_barrier", "s_endpgm", "s_setprio", "s_sleep"):
                self.cls = "misc"
            elif op.startswith("s_cmp") or op.startswith("s_bitcmp"):
                self.rd = U(R)
            elif "saveexec" in op:
                self.wr, self.rd = R[0] | {("s", "exec")}, U(R[1:])
            else:
                self.wr, self.rd = R[0], U(R[1:])
        else:
            raise ValueError("unknown instruction: " + text)


def need(p, c):
    n = 0
    V = lambda s: {r for r in s if r[0] in "va"}
    S = lambda s: {r for r in s if r[0] == "s"}
    if p.cls == "valu":
        pw = V(p.wr)
        isdot = p.op.startswith("v_dot")
        if c.cls == "mfma" and pw & c.rd:
            n = max(n, 3 if isdot else 2)
        if c.cls == "valu":
            if (c.op.startswith("v_readfirstlane") or c.op.startswith("v_readlane")) and pw & c.rd:
                n = max(n, 1)
            if p.op.replace("_e32", "").replace("_e64", "") in TRANS and pw & c.rd:
                n = max(n, 1)
            if (c.dpp or c.op.startswith("v_permlane")) and pw & c.rd:
                n = max(n, 2)
            if S(p.wr) & c.rd:
                n = max(n, 4 if ("lane" in c.op and not c.op.startswith("v_permlane")) else 2)
        if isdot and c.cls in ("valu", "ds", "vmem"):
            if c.op == p.op:
                if pw & c.ab:
                    n = max(n, 3)
            elif pw & (c.rd | c.wr):
                n = max(n, 3)
        if c.cls == "vmem" and S(p.wr) & c.rd:
            n = max(n, 5)
        if c.cls == "salu" and S(p.wr) & c.rd:
            n = max(n, 1)
    elif p.cls == "mfma":
        big = {4: 8, 8: 12}[p.passes]
        if c.cls in ("valu", "ds", "vmem") and p.wr & (c.rd | c.wr):
            n = max(n, big)
        if c.cls == "mfma":
            if p.wr & c.ab:
                n = max(n, big)
            if p.wr & c.srcc and not (p.wr == c.srcc and p.passes == c.passes):
                n = max(n, big - 2)
            if p.wr & c.wr and not (p.wr == c.srcc):
                n = max(n, big - 2)
        if c.cls == "valu" and p.srcc & c.wr:
            n = max(n, {4: 3, 8: 7}[p.passes])
    elif p.cls == "salu":
        if ("s", "m0") in p.wr and c.cls == "vmem" and c.lds:
            n = max(n, 1)
    elif p.cls == "vmem":
        if p.srcc and p.srcc & c.wr:
            n = max(n, 2)
    return n


class K:
    def __init__(self):
        self.ins = []
        self.uid = 0

    def __call__(self, text):
        for ln in text.split("\n"):
            ln = ln.split(";")[0].strip()
            if ln:
                self.ins.append(Ins(ln))

    def lab(self, base="L"):
        self.uid += 1
        return f"{base}_{self.uid}"

    def finalize(self):
        out = []
        WIN = 14
        hist = [[]]
        pend = {}
        nops = 0
        for c in self.ins:
            if c.cls == "label":
                name = c.text[:-1]
                hist = hist + pend.pop(name, [])
                out.append(c)
                continue
            if c.cls == "dir":
                out.append(c)
                continue
            req = 0
            for h in hist:
                for p, d in h:
                    req = max(req, need(p, c) - d)
            if req > 0:
                nops += 1
                out.append(Ins(f"s_nop {req-1}"))
            adv = max(req, 0)
            nh = []
            for h in hist:
                h2 = [(p, d + adv + c.states) for p, d in h if d + adv + c.states < WIN]
                h2.append((c, 0))
                nh.append(h2)
            if len(nh) > 1:
                seen, m = set(), []
                for h in nh:
                    key = tuple((id(p), d) for p, d in h)
                    if key not in seen:
                        seen.add(key)
                        m.append(h)
                nh = m
            hist = nh
            out.append(c)
            if c.cls == "branch":
                pend.setdefault(c.target, []).extend([list(h) for h in hist])
                if c.op == "s_branch":
                    hist = [[]]
            if c.op == "s_endpgm":
                hist = [[]]
        self.nops = nops
        return "\n".join(("" if (i.islabel or i.cls == "dir") else "    ") + i.text for i in out) + "\n"


class VM:
    def __init__(self, k):
        self.k = k
        self.tags = []

    def issue(self, tag, text):
        self.k(text)
        self.tags.append(tag)

    def wait(self, *tags):
        last = -1
        for i, t in enumerate(self.tags):
            if t in tags:
                last = i
        assert last >= 0, tags
        n = len(self.tags) - 1 - last
        assert n <= 63
        self.k(f"s_waitcnt vmcnt({n})")

    def outstanding_check(self):
        pass

    def drain(self):
        self.k("s_waitcnt vmcnt(0)")
        self.tags = []
```

```python
import sys, struct
from asmfw import K, VM

NAME = "sequential_preLN__sliding_local_dilated__glu_gated_swiglu__prompt"
HDR = open(f"cdna_kernels/{NAME}.s.ref").read().split("; Override launch")[0]

GS = 2 << 20
OBUF = 0
HBUF = 786432
STAT2 = HBUF + 327680
EXPB = STAT2 + 40960
FLAGS = EXPB + 32 * 5376
TSB = FLAGS + 1024
XS = lambda s: s * 14336
W1S = lambda s: 57344 + s * 24576
MISC = 155648
STAT1 = MISC
PUREW = MISC + 896
STAT3 = MISC + 1024
OUTST = MISC + 3072
IMG, RS, PB = 53248, 496, 52 * 496 + 8
WOP = [106496 + 8192 * i for i in range(6)] + [28672 + 8192 * i for i in range(3)] + [0]
XRES = 14336
A2S = lambda s: 53248 + s * 11264
W3S = [106496, 131072, 0, 24576]
A3S = lambda s: 49152 + s * 16384
W4P = [8192 * i for i in range(6)] + [106496 + 8192 * i for i in range(6)] + [98304]
OOB = 0x80000000
SPIN = 200000

f2u = lambda x: struct.unpack("<I", struct.pack("<f", x))[0]
LOG2E = 1.4426950408889634
QSCALE = (20 ** -0.5) * LOG2E

SX, SWQ, SWO, SW1, SW3, SW2, SOUT, SWS, SDBG = ("s[4:7]", "s[8:11]", "s[12:15]", "s[16:19]", "s[20:23]",
                                                "s[24:27]", "s[28:31]", "s[32:35]", "s[36:39]")
sW, sG, sR, sT, sJ, sJM, sLW, sSLOW = "s40", "s41", "s42", "s43", "s44", "s45", "s46", "s47"
sNP, sFLAG, sROW, sXCC = "s54", "s55", "s62", "s63"


def vr(a, n=1):
    return f"v{a}" if n == 1 else f"v[{a}:{a+n-1}]"


def interleave(k, main, side, first=1, every=1):
    si = 0
    for i, m in enumerate(main):
        k(m)
        if i + 1 >= first and (i + 1 - first) % every == 0 and si < len(side):
            k(side[si])
            si += 1
    while si < len(side):
        k(side[si])
        si += 1


class Gen:
    def __init__(self, opt):
        self.o = opt
        self.k = K()
        self.nts = {"c": 0, "l": 0}

    def ts(self, n):
        if not self.o.get("ts"):
            return
        self.k(f"s_memtime s[84:85]\ns_waitcnt lgkmcnt(0)\nv_writelane_b32 v63, s84, {n}")

    def ts_flush(self):
        if not self.o.get("ts"):
            return
        k = self.k
        skip = k.lab("L_tsskip")
        k(f"s_and_b32 s48, {sW}, 3\ns_cmp_lg_u32 s48, 0\ns_cbranch_scc1 {skip}")
        k(f"s_memrealtime s[84:85]\ns_waitcnt lgkmcnt(0)\nv_writelane_b32 v63, s84, 62\nv_writelane_b32 v63, {sXCC}, 63")
        k(f"s_lshl_b32 s48, {sR}, 9\ns_lshr_b32 s49, {sW}, 2\ns_lshl_b32 s49, s49, 8\ns_add_u32 s48, s48, s49\ns_add_u32 s48, s48, {TSB}")
        k(f"v_lshlrev_b32 v62, 2, v1\nbuffer_store_dword v63, v62, {SWS}, s48 offen")
        k(f"{skip}:")

    def signal(self, kind, byte_is_wave=True):
        k = self.k
        fast, done = k.lab("L_sigf"), k.lab("L_sigd")
        k("v_mov_b32 v60, 1")
        if byte_is_wave:
            k(f"s_add_u32 s48, {sFLAG}, {sW}")
        else:
            k(f"s_mov_b32 s48, {sFLAG}")
        k(f"s_cmp_eq_u32 {sSLOW}, 0")
        k("s_mov_b64 exec, 1")
        k("s_waitcnt vmcnt(0)")
        k(f"s_cbranch_scc1 {fast}")
        k("buffer_wbl2 sc1\ns_waitcnt vmcnt(0)")
        k(f"buffer_store_byte v60, off, {SWS}, s48 offset:{kind*256} sc1")
        k(f"s_branch {done}")
        k(f"{fast}:")
        k(f"buffer_store_byte v60, off, {SWS}, s48 offset:{kind*256}")
        k(f"{done}:")
        k("s_mov_b64 exec, -1")

    def poll(self, kind, both, want=0x01010101):
        k = self.k
        loop, out, done = k.lab("L_poll"), k.lab("L_pollo"), k.lab("L_polld")
        k(f"s_mov_b32 s48, 0\ns_mov_b32 s49, {want}")
        k(f"{loop}:")
        if both:
            k(f"buffer_load_dwordx2 v[58:59], v61, {SWS}, 0 offen offset:{kind*256} sc1")
        else:
            k(f"buffer_load_dword v58, v61, {SWS}, 0 offen offset:{kind*256} sc1")
        k(f"s_add_u32 s48, s48, 1\ns_cmp_gt_u32 s48, {SPIN}\ns_cbranch_scc1 {out}")
        k("s_waitcnt vmcnt(0)")
        if both:
            k("v_and_b32 v58, v58, v59")
        k("v_cmp_ne_u32 vcc, s49, v58")
        k(f"s_cbranch_vccnz {loop}")
        k(f"{out}:")
        k(f"s_cmp_eq_u32 {sSLOW}, 0\ns_cbranch_scc1 {done}")
        k("buffer_inv sc1\ns_waitcnt vmcnt(0)")
        k(f"{done}:")
        k("s_mov_b64 exec, -1")

    def hello_issue(self):
        self.k(f"s_lshl_b32 s48, {sG}, 5\nbuffer_load_dword v11, off, {SDBG}, s48 sc1")

    def hello_check(self):
        k = self.k
        loop, ok = k.lab("L_hl"), k.lab("L_hok")
        k("s_mov_b32 s50, 0")
        k(f"{loop}:")
        k("s_waitcnt vmcnt(0)\nv_readfirstlane_b32 s49, v11")
        k(f"s_add_u32 s50, s50, 1\ns_and_b32 s51, s49, 0xff\ns_cmp_eq_u32 s51, 32\ns_cbranch_scc1 {ok}")
        k(f"s_cmp_gt_u32 s50, {SPIN}\ns_cbranch_scc1 {ok}")
        k("s_sleep 4")
        self.hello_issue()
        k(f"s_branch {loop}")
        k(f"{ok}:")
        k(f"s_mul_i32 s50, {sXCC}, {sXCC}\ns_lshl_b32 s50, s50, 16\ns_lshl_b32 s51, {sXCC}, 8\ns_add_u32 s50, s50, s51")
        k("s_add_u32 s50, s50, 1\ns_lshl_b32 s50, s50, 5")
        k(f"s_cmp_lg_u32 s50, s49\ns_cselect_b32 {sSLOW}, 1, 0")
        if self.o.get("force_slow"):
            k(f"s_mov_b32 {sSLOW}, 1")
        k(f"v_mov_b32 v11, {sSLOW}\nv_mov_b32 v60, {PUREW}\nds_write_b32 v60, v11")

    def read_pure(self):
        k = self.k
        k(f"v_mov_b32 v60, {PUREW}\nds_read_b32 v60, v60\ns_waitcnt lgkmcnt(0)\nv_readfirstlane_b32 {sSLOW}, v60")

    def prologue(self):
        k = self.k
        k("s_cmp_ge_u32 s2, 256\ns_cbranch_scc1 L_end")
        k("s_load_dwordx16 s[64:79], s[0:1], 0\ns_load_dwordx4 s[80:83], s[0:1], 64")
        if self.o.get("ts"):
            k("s_memrealtime s[86:87]\ns_memtime s[84:85]")
        k("v_lshrrev_b32 v1, 6, v0")
        if self.o.get("perm"):
            k(f"s_lshr_b32 {sG}, s2, 5\ns_and_b32 {sR}, s2, 31")
        else:
            k(f"s_and_b32 {sG}, s2, 7\ns_lshr_b32 {sR}, s2, 3")
        k(f"v_readfirstlane_b32 {sW}, v1")
        k("v_and_b32 v1, 63, v0\nv_and_b32 v2, 15, v0\nv_lshrrev_b32 v3, 4, v1")
        k(f"s_mul_i32 {sT}, {sR}, 26\ns_lshr_b32 {sT}, {sT}, 8\ns_mul_i32 s48, {sT}, 10\ns_sub_u32 {sJ}, {sR}, s48")
        k(f"s_cmp_ge_u32 {sR}, 30\ns_cselect_b32 {sT}, 0, {sT}")
        k(f"s_sub_u32 s48, {sJ}, 5\ns_cmp_ge_u32 {sJ}, 5\ns_cselect_b32 {sJM}, s48, {sJ}")
        k(f"s_cmp_eq_u32 {sT}, 2\ns_cselect_b32 {sNP}, 40, 44")
        k(f"s_lshl_b32 {sROW}, {sG}, 8\ns_mul_i32 s48, {sT}, 88\ns_add_u32 {sROW}, {sROW}, s48")
        k(f"s_lshl_b32 {sFLAG}, {sR}, 3\ns_add_u32 {sFLAG}, {sFLAG}, {FLAGS}")
        k(f"s_getreg_b32 {sXCC}, hwreg(HW_REG_XCC_ID)\ns_and_b32 {sXCC}, {sXCC}, 7")
        k(f"s_and_b32 {sLW}, {sW}, 3\ns_lshl_b32 {sLW}, {sLW}, 10")
        k(f"s_mov_b32 {sSLOW}, 1")
        for b, n in ((4, 2621440), (8, 2457600), (12, 819200), (16, 1966080), (20, 1966080), (24, 1966080),
                     (28, 2621440), (32, GS), (36, 256)):
            k(f"s_mov_b32 s{b+2}, {n}\ns_mov_b32 s{b+3}, 0x20000")
        k(f"s_lshl_b32 s48, {sG}, 21")
        k("s_waitcnt lgkmcnt(0)")
        for b, p in ((4, 64), (8, 66), (12, 68), (16, 72), (20, 74), (24, 76), (28, 78), (36, 80)):
            k(f"s_mov_b64 s[{b}:{b+1}], s[{p}:{p+1}]")
        k("s_add_u32 s32, s82, s48\ns_addc_u32 s33, s83, 0")
        if self.o.get("ts"):
            k("v_mov_b32 v63, 0\nv_writelane_b32 v63, s84, 0\nv_writelane_b32 v63, s86, 61")
        k(f"s_cmp_lt_u32 {sW}, 4\ns_cbranch_scc1 L_comp")
        k("s_mov_b32 s3, 1")
        k(f"s_cmp_ge_u32 {sR}, 30\ns_cbranch_scc1 L_ld_helper")

    def attn_setup(self):
        k = self.k
        k(f"s_and_b32 s64, {sW}, 3\ns_lshr_b32 s65, {sW}, 2")
        k(f"s_mul_i32 s66, {sJM}, 3\ns_cmp_ge_u32 {sJM}, 3\ns_addc_u32 s66, s66, s64")
        k(f"s_mul_i32 s67, s66, 40\ns_lshl_b32 s48, {sJM}, 7\ns_sub_u32 s67, s67, s48\ns_add_u32 s67, s67, {IMG+16}")
        k(f"s_cmp_ge_u32 {sJ}, 5\ns_cselect_b32 s48, 16, 0\ns_add_u32 s66, s66, s48")
        k(f"s_mul_i32 s72, s65, {PB}\ns_add_u32 s67, s67, s72")
        k(f"s_cmp_eq_u32 {sJM}, 2\ns_cselect_b32 s48, 4, 3\ns_cmp_lt_u32 s64, s48\ns_cselect_b32 s68, 1, 0")
        k(f"s_sub_u32 s48, {sJM}, 1\ns_cmp_lt_u32 s48, 2\ns_cselect_b32 s49, 1, 0\ns_cmp_eq_u32 s64, 0\ns_cselect_b32 s49, s49, 0")
        k(f"s_sub_u32 s48, {sJM}, 2\ns_cmp_lt_u32 s48, 2\ns_cselect_b32 s50, 1, 0\ns_add_u32 s48, s64, {sJM}\ns_cmp_eq_u32 s48, 5\ns_cselect_b32 s50, s50, 0")
        k(f"s_or_b32 s69, s49, s50\ns_add_u32 s70, {sR}, s50\ns_sub_u32 s70, s70, s49\ns_mul_i32 s71, s50, 144")
        k(f"v_lshlrev_b32 v60, 2, v3\nv_sub_u32 v59, v2, v60\nv_mov_b32 v58, {f2u(-1e30):#x}")
        k(f"s_or_b32 s48, {sG}, {sT}\ns_cmp_eq_u32 s48, 0\ns_cselect_b32 s48, 8, 0")
        for r in range(4):
            k(f"v_add_u32 v57, {8-r}, v59\nv_cmp_gt_u32 vcc, 8, v57\nv_cndmask_b32 v{224+r}, v58, 0, vcc")
            k(f"v_subrev_u32 v57, {8+r}, v59\nv_cmp_gt_u32 vcc, 8, v57\nv_cndmask_b32 v{228+r}, v58, 0, vcc")
            k(f"v_add_u32 v57, {r}, v60\nv_cmp_gt_u32 vcc, s48, v57\nv_cndmask_b32 v{232+r}, v{224+r}, v58, vcc")
            k(f"v_mov_b32 v{236+r}, 0x3f803f80")
        k(f"s_movk_i32 s48, {RS}")
        k("v_mul_u32_u24 v57, s48, v2\nv_add_u32 v57, s67, v57")
        k("v_lshl_add_u32 v240, v3, 3, v57\nv_add_u32 v241, 32, v57")
        k("v_min_u32 v57, 3, v2\nv_mul_u32_u24 v57, s48, v57\nv_add_u32 v57, s67, v57")
        k("v_lshl_add_u32 v242, v3, 3, v57\nv_add_u32 v243, 32, v57")
        k("v_lshrrev_b32 v57, 2, v1\nv_and_b32 v56, 3, v1\nv_lshlrev_b32 v56, 3, v56\nv_add_u32 v56, s67, v56")
        k("v_mad_u32_u24 v244, v57, s48, v56")
        k("v_min_u32 v57, 3, v57\nv_mad_u32_u24 v245, v57, s48, v56")
        k(f"s_mul_i32 s49, {sT}, 88\ns_mul_i32 s50, {sNP}, s65\ns_add_u32 s49, s49, s50\ns_lshl_b32 s49, s49, 4")
        k("s_and_b32 s50, s66, 1\ns_lshl_b32 s50, s50, 3\ns_add_u32 s49, s49, s50")
        k(f"s_lshr_b32 s50, s66, 1\ns_lshl_b32 s51, s50, 14\ns_add_u32 s51, s51, s49")
        k("v_lshlrev_b32 v57, 4, v2\nv_lshl_add_u32 v246, v3, 12, v57\nv_add_u32 v246, s51, v246")
        k(f"s_add_u32 s50, s50, 64\ns_lshl_b32 s50, s50, 12\ns_add_u32 s50, s50, s49")
        k(f"v_add_u32 v248, s50, v57\nv_mov_b32 v58, {OOB:#x}\nv_cmp_eq_u32 vcc, 0, v3\nv_cndmask_b32 v248, v58, v248, vcc")
        k(f"s_sub_u32 s50, {sNP}, 32\nv_cmp_gt_u32 vcc, s50, v2\nv_cndmask_b32 v247, v58, v246, vcc\nv_cndmask_b32 v249, v58, v248, vcc")
        k(f"s_mul_i32 s49, s70, 5376\ns_lshl_b32 s50, s65, 4\ns_add_u32 s49, s49, s50\ns_add_u32 s49, s49, {EXPB}")
        k("v_lshlrev_b32 v250, 5, v1\nv_add_u32 v250, s49, v250")
        k(f"s_add_u32 s49, s72, s71\ns_add_u32 s49, s49, {IMG}\nv_mul_u32_u24 v251, s48, v1\nv_add_u32 v251, s49, v251")

    def ld_p1_stage(self, vm, i):
        k = self.k
        s = i % 4
        k("s_lshl_b32 s56, s50, 7\ns_mul_i32 s57, s50, 245760\ns_add_u32 s58, s57, 122880")
        for q in range(3):
            k(f"s_add_u32 m0, {sLW}, {XS(s) + q*4096}")
            vm.issue(("p1", i), f"buffer_load_dwordx4 v{6+q}, {SX}, s56 offen lds")
        k(f"s_mov_b32 m0, {XS(s) + 12288}\ns_mov_b64 exec, s[52:53]")
        vm.issue(("p1", i), f"buffer_load_dwordx4 v9, {SX}, s56 offen lds")
        k("s_mov_b64 exec, -1")
        for hf in range(2):
            for mat in range(3):
                k(f"s_add_u32 m0, {sLW}, {W1S(s) + mat*8192 + hf*4096 - mat*1280}")
                vm.issue(("p1", i), f"buffer_load_dwordx4 v10, {SWQ}, s{57+hf} offen offset:{mat*1280} lds")
        k("s_add_u32 s50, s50, 1\ns_cmp_eq_u32 s50, 10\ns_cselect_b32 s50, 0, s50")

    def ld_wo_piece(self, vm, p):
        k = self.k
        for hf in range(2):
            ks = 2 * p + hf
            if ks < 16:
                k(f"s_add_u32 s56, s73, {40*ks*1280}")
            else:
                k(f"s_add_u32 s56, s74, {160*(ks-16)*1280}")
            k(f"s_add_u32 m0, {sLW}, {WOP[p] + hf*4096}")
            vm.issue(("wo", p), f"buffer_load_dwordx4 v12, {SWO}, s56 offen lds")

    def ld_stats(self, i):
        k = self.k
        s = i % 4
        for q in range(3):
            k(f"ds_read_b128 v[{20+4*q}:{23+4*q}], v18 offset:{XS(s) + q*4096}")
        k(f"ds_read_b128 v[32:35], v19 offset:{XS(s) + 12288}")
        for q in range(4):
            k(f"s_waitcnt lgkmcnt({3-q})")
            for d in range(4):
                k(f"v_dot2c_f32_bf16 v{36+q}, v{20+4*q+d}, v44")
                k(f"v_dot2c_f32_bf16 v{40+q}, v{20+4*q+d}, v{20+4*q+d}")

    def ld_common_setup(self):
        k = self.k
        k(f"s_lshl_b32 s48, {sJ}, 7")
        k("v_lshrrev_b32 v57, 5, v1\nv_and_b32 v56, 3, v4")
        k("v_mad_u32_u24 v58, v57, 20, v56\ns_movk_i32 s49, 1280\nv_mad_u32_u24 v12, v58, s49, v13")
        k("v_lshl_add_u32 v58, v57, 4, v56\nv_mad_u32_u24 v14, v58, s49, v13")
        k("s_mul_i32 s73, s51, 5120\ns_mul_i32 s74, s51, 51200\ns_add_u32 s74, s74, 20480")
        k(f"s_mul_i32 s48, {sT}, 88\ns_lshl_b32 s49, s51, 8\ns_add_u32 s48, s48, s49\ns_lshl_b32 s48, s48, 4")
        k("v_lshl_add_u32 v15, v1, 4, s48")
        k(f"v_add_u32 v16, 1024, v15\nv_add_u32 v57, {16384 - 88*16}, v16\nv_cmp_gt_u32 vcc, 24, v1\nv_cndmask_b32 v16, v57, v16, vcc")
        k(f"v_add_u32 v17, {2048 + 16384 - 88*16}, v15")
        k("s_mul_i32 s75, s51, 2816")
        k("s_bfm_b64 s[76:77], 48, 0")
        k(f"s_and_b32 s48, {sR}, 15\ns_mul_i32 s48, s48, 192\ns_mul_i32 s49, s51, {16*3072}\ns_add_u32 s48, s48, s49")
        k("s_movk_i32 s49, 3072")
        for i in range(3):
            k(f"v_add_u32 v57, {64*i}, v1\nv_mul_u32_u24 v58, 0x1556, v57\nv_lshrrev_b32 v58, 16, v58")
            k("v_mul_u32_u24 v59, 12, v58\nv_sub_u32 v57, v57, v59")
            k("v_lshrrev_b32 v59, 1, v58\nv_and_b32 v59, 2, v59\nv_xor_b32 v57, v57, v59")
            k(f"v_lshl_add_u32 v57, v57, 4, s48\nv_mad_u32_u24 v{45+i}, v58, s49, v57")
        k("s_mul_i32 s78, s51, 3072")
        k(f"s_lshr_b32 s48, {sR}, 4\ns_lshl_b32 s49, s48, 11\ns_lshl_b32 s56, s51, 12\ns_add_u32 s49, s49, s56\ns_add_u32 s49, s49, {HBUF}")
        k("v_lshl_add_u32 v48, v1, 4, s49")
        k("s_lshl_b32 s79, s51, 11")
        k(f"s_lshl_b32 s49, s48, 10\ns_lshl_b32 s56, s51, 8\ns_add_u32 s49, s49, s56\ns_add_u32 s49, s49, {STAT2}")
        k("v_and_b32 v57, 31, v1\nv_lshrrev_b32 v58, 5, v1\nv_lshlrev_b32 v58, 11, v58\nv_lshl_add_u32 v49, v57, 3, v58\nv_add_u32 v49, s49, v49")
        k(f"s_lshl_b32 s49, s51, 9\ns_add_u32 s49, s49, {STAT3}\nv_lshl_add_u32 v50, v57, 4, s49")
        k(f"v_lshlrev_b32 v61, 3, v1\nv_add_u32 v61, {FLAGS}, v61")

    def ld_lane_basics(self):
        k = self.k
        k(f"s_and_b32 s51, {sW}, 3")
        k("v_lshrrev_b32 v4, 3, v1\nv_and_b32 v5, 7, v1")
        k("s_and_b32 s48, s51, 1\ns_lshl_b32 s48, s48, 2")
        k(f"v_and_b32 v57, 1, v3\nv_lshlrev_b32 v57, 1, v57\nv_or_b32 v57, s48, v57\nv_xor_b32 v57, v57, v5")
        k(f"s_lshl_b32 s49, {sJ}, 7\nv_lshl_add_u32 v13, v57, 4, s49")

    def loader_p1(self):
        k = self.k
        vm = VM(k)
        self.ld_lane_basics()
        k(f"s_lshl_b32 s49, s51, 3\ns_add_u32 s56, {sROW}, s49\ns_sub_u32 s56, s56, 16")
        k("v_add_u32 v57, s56, v4\ns_movk_i32 s57, 1280\nv_mul_lo_u32 v57, v57, s57")
        k("v_or_b32 v58, s48, v3\nv_xor_b32 v58, v58, v5\nv_lshl_add_u32 v6, v58, 4, v57")
        k(f"v_add_u32 v7, {32*1280}, v6\nv_add_u32 v8, {64*1280}, v6")
        k(f"s_add_u32 s56, {sROW}, 80\nv_add_u32 v57, s56, v4\nv_mul_lo_u32 v57, v57, s57")
        k("v_xor_b32 v58, v3, v5\nv_lshl_add_u32 v9, v58, 4, v57")
        k("v_add_u32 v57, s49, v4\ns_movk_i32 s57, 3840\nv_mad_u32_u24 v10, v57, s57, v13")
        k("s_lshl_b32 s49, s51, 4\ns_bfm_b64 s[52:53], 16, s49")
        if self.o.get("rot", 1):
            k(f"s_mul_i32 s50, {sG}, 10\ns_lshr_b32 s50, s50, 3")
        else:
            k("s_mov_b32 s50, 0")
        for i in range(4):
            self.ld_p1_stage(vm, i)
        self.ts(1)
        k("s_mov_b32 s80, s50")
        self.attn_setup()
        k(f"s_and_b32 s51, {sW}, 3")
        self.ld_common_setup()
        for i in range(3):
            k(f"s_mul_i32 s48, s51, 22\ns_add_u32 s48, s48, {8*i}\nv_add_u32 v57, s48, v4")
            k(f"v_lshlrev_b32 v58, 1, v57\ns_lshl_b32 s49, {sNP}, 1\ns_sub_u32 s49, s49, 1\nv_subrev_u32 v59, s49, v58")
            k(f"v_cmp_gt_u32 vcc, {sNP}, v57\nv_cndmask_b32 v58, v59, v58, vcc\nv_add_u32 v58, {sROW}, v58")
            k(f"v_and_b32 v59, 7, v57\nv_xor_b32 v59, v59, v5\ns_lshl_b32 s49, {sJ}, 7\nv_lshl_add_u32 v59, v59, 4, s49")
            k(f"s_movk_i32 s49, 1280\nv_mad_u32_u24 v{51+i}, v58, s49, v59")
        k("s_mov_b32 s50, s80")
        k(f"v_lshlrev_b32 v19, 4, v1\nv_add_u32 v18, {sLW}, v19\nv_mov_b32 v44, 0x3f803f80")
        for q in range(8):
            k(f"v_mov_b32 v{36+q}, 0")
        for i in range(10):
            vm.wait(("p1", i))
            k("s_barrier")
            self.ts(2 + i)
            if 1 <= i <= 6:
                self.ld_p1_stage(vm, i + 3)
            if i == 7:
                for p in (0, 1, 2, 6):
                    self.ld_wo_piece(vm, p)
            if i == 8:
                for p in (3, 4, 5, 7, 8):
                    self.ld_wo_piece(vm, p)
            self.ld_stats(i)
        for ctl in ("quad_perm:[1,0,3,2]", "quad_perm:[2,3,0,1]", "row_half_mirror"):
            for q in range(8):
                k(f"v_add_f32_dpp v{36+q}, v{36+q}, v{36+q} {ctl} row_mask:0xf bank_mask:0xf")
        k(f"s_mov_b32 s48, {f2u(1.0/640):#x}\ns_mov_b32 s49, {f2u(1e-5):#x}")
        for q in range(4):
            k(f"v_mul_f32 v{21+2*q}, s48, v{36+q}\nv_mul_f32 v{40+q}, s48, v{40+q}")
        for q in range(4):
            k(f"v_fma_f32 v{40+q}, -v{21+2*q}, v{21+2*q}, v{40+q}")
        for q in range(4):
            k(f"v_max_f32 v{40+q}, 0, v{40+q}")
        for q in range(4):
            k(f"v_add_f32 v{40+q}, s49, v{40+q}")
        for q in range(4):
            k(f"v_rsq_f32 v{20+2*q}, v{40+q}")
        for q in range(4):
            k(f"v_sub_f32 v{21+2*q}, 0, v{21+2*q}")
        k(f"s_lshl_b32 s48, s51, 6\nv_lshlrev_b32 v57, 3, v4\nv_add_u32 v57, {STAT1}, v57\nv_add_u32 v58, s48, v57")
        k("s_mov_b32 s48, 0x01010101\ns_mov_b32 s49, s48\ns_mov_b64 exec, s[48:49]")
        for q in range(3):
            k(f"ds_write_b64 v58, v[{20+2*q}:{21+2*q}] offset:{q*256}")
        k("s_and_b64 exec, s[48:49], s[52:53]")
        k("ds_write_b64 v57, v[26:27] offset:768")
        k("s_mov_b64 exec, -1")
        self.ld_wo_piece(vm, 9)
        k("s_waitcnt lgkmcnt(0)\ns_barrier")
        self.ts(12)
        for i in range(3):
            k(f"s_add_u32 m0, s75, {XRES + i*1024}")
            if i == 2:
                k("s_mov_b64 exec, s[76:77]")
            vm.issue("xres", f"buffer_load_dwordx4 v{51+i}, {SX}, 0 offen lds")
        k("s_mov_b64 exec, -1")
        self.read_pure()
        k("s_branch L_attn")

    def ld_act88(self, vm, tag, s, slot):
        k = self.k
        k(f"s_mov_b32 s56, {OBUF + s*32768}")
        for i in range(3):
            k(f"s_add_u32 m0, s75, {A2S(slot) + i*1024}")
            if i == 2:
                k("s_mov_b64 exec, s[76:77]")
            vm.issue(tag, f"buffer_load_dwordx4 v{15+i}, {SWS}, s56 offen sc1 lds")
        k("s_mov_b64 exec, -1")

    def ld_w3_stage(self, vm, i):
        k = self.k
        k(f"s_mov_b32 s56, {i*64*3072}")
        for mat, srd in enumerate((SW1, SW3)):
            for q in range(3):
                k(f"s_add_u32 m0, s78, {W3S[i % 4] + mat*12288 + q*1024}")
                vm.issue(("w3", i), f"buffer_load_dwordx4 v{45+q}, {srd}, s56 offen lds")

    def ld_a3_stage(self, vm, i):
        k = self.k
        for ksub in range(2):
            k(f"s_mov_b32 s56, {(2*i + ksub)*16384}")
            k(f"s_add_u32 m0, s79, {A3S(i % 3) + ksub*8192}")
            for q in range(2):
                vm.issue(("a3", i), f"buffer_load_dwordx4 v48, {SWS}, s56 offen offset:{q*1024} sc1 lds")

    def ld_w4_piece(self, vm, p):
        k = self.k
        for hf in range(2):
            k(f"s_add_u32 s56, s73, {(64*p + 32*hf)*1280}")
            k(f"s_add_u32 m0, {sLW}, {W4P[p % 13] + hf*4096}")
            vm.issue(("w4", p), f"buffer_load_dwordx4 v14, {SW2}, s56 offen lds")

    def ld_poll(self, kind, both, maskcode):
        k = self.k
        skip = k.lab("L_np")
        k(f"s_cmp_lg_u32 {sW}, 4\ns_cbranch_scc1 {skip}")
        k(maskcode)
        self.poll(kind, both)
        k(f"{skip}:")
        k("s_barrier")

    def loader_rest(self):
        k = self.k
        vm = VM(k)
        k("L_ld_p2:")
        self.ts(20)
        self.ld_poll(1, True, f"s_mul_i32 s48, {sT}, 10\ns_bfm_b64 exec, 10, s48")
        self.ts(21)
        for i in range(4):
            self.ld_act88(vm, ("a2", i), i, i)
        for i in range(10):
            vm.wait(("a2", i))
            k("s_barrier")
            if i in (0, 9):
                self.ts(22 + (i == 9))
            if 1 <= i <= 6:
                self.ld_act88(vm, ("a2", i + 3), i + 3, (i + 3) % 4)
            if i == 7:
                self.ld_w3_stage(vm, 0)
            if i == 8 and self.o.get("w3pre", 2) >= 2:
                self.ld_w3_stage(vm, 1)
        k("s_barrier")
        k("L_ld_p3:")
        npre = self.o.get("w3pre", 2)
        for i in range(2, npre):
            self.ld_w3_stage(vm, i)
        self.ts(24)
        self.ld_poll(2, False, f"s_lshr_b32 s48, {sR}, 4\ns_mul_i32 s48, s48, 10\ns_bfm_b64 exec, 20, s48")
        self.ts(25)
        for i in range(4):
            if i < 3:
                self.ld_a3_stage(vm, i)
            if i >= npre:
                self.ld_w3_stage(vm, i)
        for i in range(10):
            vm.wait(("a3", i), ("w3", i))
            if i == 5:
                k("s_waitcnt lgkmcnt(0)")
            k("s_barrier")
            self.ts(26 + i)
            if i >= 1 and i + 2 <= 9:
                self.ld_a3_stage(vm, i + 2)
            if i >= 1 and i + 3 <= 9:
                self.ld_w3_stage(vm, i + 3)
            if i == 0:
                for q in range(10):
                    k(f"s_mov_b32 s56, {q*4096}")
                    vm.issue("st", f"buffer_load_dwordx2 v[{20+2*q}:{21+2*q}], v49, {SWS}, s56 offen sc1")
            if i == 4:
                vm.wait("st")
                for q in range(1, 10):
                    k(f"v_pk_add_f32 v[20:21], v[20:21], v[{20+2*q}:{21+2*q}]")
                k("v_mov_b32 v22, v20\nv_mov_b32 v23, v21")
                k("v_permlane32_swap_b32 v22, v20\nv_permlane32_swap_b32 v23, v21")
                k(f"s_mov_b32 s48, {f2u(1.0/640):#x}\ns_mov_b32 s49, {f2u(1e-5):#x}")
                k("v_add_f32 v20, v20, v22\nv_add_f32 v21, v21, v23")
                k("v_mul_f32 v20, s48, v20\nv_mul_f32 v21, s48, v21")
                k("v_fma_f32 v21, -v20, v20, v21\nv_max_f32 v21, 0, v21\nv_add_f32 v26, s49, v21")
                k(f"v_rsq_f32 v25, v26\nv_sub_f32 v24, 0, v20\nv_mov_b32 v27, 0\nv_mul_f32 v25, {f2u(-LOG2E):#x}, v25")
                k("s_mov_b64 exec, 0xffffffff\nds_write_b128 v50, v[24:27]\ns_mov_b64 exec, -1")
            w4pre = self.o.get("w4pre", 9)
            if i >= 7:
                for p in range(3 * (i - 7), 3 * (i - 6)):
                    if p < w4pre:
                        self.ld_w4_piece(vm, p)
        k("s_barrier")
        k(f"s_cmp_ge_u32 {sR}, 30\ns_cbranch_scc1 L_fin")
        for p in range(9, w4pre):
            self.ld_w4_piece(vm, p)
        self.ts(36)
        self.ld_poll(3, False, f"s_cmp_eq_u32 {sT}, 1\ns_cselect_b32 s48, 32, 16\ns_cmp_eq_u32 {sT}, 2\ns_cselect_b32 s49, 16, 0\ns_bfm_b64 exec, s48, s49")
        self.ts(37)
        nxt = w4pre
        for i in range(4):
            self.ld_act88(vm, ("a4", i), i, i)
            while nxt <= i:
                self.ld_w4_piece(vm, nxt)
                nxt += 1
        lead = self.o.get("w4lead", 4)
        for i in range(24):
            vm.wait(("a4", i), ("w4", i))
            k("s_barrier")
            if i in (0, 8, 16, 23):
                self.ts(38 + (i + 1) // 8)
            if i >= 1 and i + 3 <= 23:
                self.ld_act88(vm, ("a4", i + 3), i + 3, (i + 3) % 4)
            target = min(24, max(i + lead, w4pre + ((24 - w4pre) * (i + 1) + 19) // 20))
            while nxt < target and nxt - 12 <= i:
                self.ld_w4_piece(vm, nxt)
                nxt += 1
        assert nxt == 24
        k("s_branch L_fin")

    def loader_helper(self):
        k = self.k
        vm = VM(k)
        k("L_ld_helper:")
        self.ld_lane_basics()
        self.ld_common_setup()
        for i in range(min(2, self.o.get("w3pre", 2))):
            self.ld_w3_stage(vm, i)
        k("s_barrier")
        self.read_pure()
        k("s_branch L_ld_p3")

    def comp_p1(self):
        k = self.k
        k("L_comp:")
        k("s_mov_b32 s3, 0")
        noh, nores = k.lab("L_noh"), k.lab("L_nores")
        k(f"s_cmp_lg_u32 {sW}, 0\ns_cbranch_scc1 {noh}")
        k(f"s_cmp_lg_u32 {sR}, 31\ns_cbranch_scc1 {nores}")
        k(f"v_mov_b32 v4, 0\nv_mov_b32 v5, 0\nv_mov_b32 v6, 0\nv_mov_b32 v7, 0\nv_lshlrev_b32 v8, 4, v1\ns_mov_b32 s48, {FLAGS}")
        k(f"buffer_store_dwordx4 v[4:7], v8, {SWS}, s48 offen sc1\ns_waitcnt vmcnt(0)")
        k(f"{nores}:")
        k(f"s_mul_i32 s50, {sXCC}, {sXCC}\ns_lshl_b32 s50, s50, 16\ns_lshl_b32 s51, {sXCC}, 8\ns_add_u32 s50, s50, s51\ns_add_u32 s50, s50, 1")
        k(f"v_mov_b32 v9, s50\ns_lshl_b32 s48, {sG}, 5\ns_mov_b64 exec, 1")
        k(f"buffer_atomic_add v9, off, {SDBG}, s48\ns_mov_b64 exec, -1")
        k(f"{noh}:")
        k(f"s_cmp_ge_u32 {sR}, 30\ns_cbranch_scc1 L_comp_helper")
        k(f"s_mul_i32 s48, {sW}, 14336\ns_add_u32 s48, s48, 13312\nv_lshl_add_u32 v8, v1, 4, s48")
        self.attn_setup()
        k("ds_write_b128 v8, v[236:239]")
        k("v_lshrrev_b32 v57, 1, v2\nv_xor_b32 v57, v57, v3\nv_lshlrev_b32 v57, 4, v57\nv_lshl_add_u32 v4, v2, 7, v57\nv_xor_b32 v5, 64, v4")
        self.wfrag_addr(lambda: k(f"v_xor_b32 v57, {sW}, v57"))
        k(f"v_add_u32 v6, {W1S(0)}, v57\nv_add_u32 v7, {W1S(2)}, v57")
        k(f"v_lshlrev_b32 v8, 3, v2\nv_add_u32 v8, {STAT1}, v8")
        k(f"v_and_b32 v57, 1, v2\ns_movk_i32 s48, {PB}\nv_mul_u32_u24 v57, s48, v57\nv_lshrrev_b32 v58, 1, v2\ns_movk_i32 s48, {RS}")
        k(f"v_mad_u32_u24 v57, v58, s48, v57\nv_lshl_add_u32 v57, v3, 3, v57\ns_lshl_b32 s48, {sW}, 5\ns_add_u32 s48, s48, {IMG+16}\nv_add_u32 v9, s48, v57")
        k(f"v_and_b32 v57, 1, v3\nv_lshlrev_b32 v57, 3, v57\nv_lshl_add_u32 v57, v2, 4, v57")
        k(f"v_lshrrev_b32 v58, 1, v3\ns_lshr_b32 s48, {sW}, 1\nv_cmp_eq_u32 vcc, s48, v58\nv_mov_b32 v58, {OOB:#x}\nv_cndmask_b32 v10, v58, v57, vcc")
        k(f"s_mul_i32 s73, {sR}, 5376\ns_add_u32 s73, s73, {EXPB}\ns_add_u32 s74, s73, 1792\ns_add_u32 s75, s73, 3584")
        k(f"s_cmp_lt_u32 {sJM}, 2\ns_cselect_b32 s48, 3, 0\ns_cmp_eq_u32 {sJM}, 2\ns_cselect_b32 s48, 9, s48\ns_cmp_eq_u32 s48, {sW}\ns_cselect_b32 s76, 1, 0")
        acc = lambda mat, m: (64 + 4 * (m - 1), 88 + 4 * m, 116 + 4 * m)[mat]
        tiles = [(mat, m) for m in range(7) for mat in range(3) if not (mat == 0 and m == 0)]

        def reads(n):
            i, s = n // 2, n % 2
            sl, st = i % 4, 144 + 40 * (n % 2)
            r = []
            wb, wo_ = (6, W1S(sl) - W1S(0)) if sl < 2 else (7, W1S(sl) - W1S(2))
            xr = [f"ds_read_b128 {vr(st + 4*m, 4)}, v{4+s} offset:{XS(sl) + m*2048}" for m in range(7)]
            wr = [f"ds_read_b64_tr_b16 {vr(st + 28 + 4*mat + 2*h, 2)}, v{wb} offset:{wo_ + mat*8192 + s*4096 + h*512}"
                  for mat in range(3) for h in range(2)]
            return wr + xr

        def mfmas(n):
            st = 144 + 40 * (n % 2)
            return [f"v_mfma_f32_16x16x32_bf16 {vr(acc(mat, m), 4)}, {vr(st + 28 + 4*mat, 4)}, {vr(st + 4*m, 4)}, "
                    + ("0" if n == 0 else vr(acc(mat, m), 4)) for (mat, m) in tiles]

        k("s_waitcnt lgkmcnt(0)")
        self.ts(1)
        k("s_barrier")
        self.ts(2)
        for r in reads(0):
            k(r)
        for n in range(20):
            if n == 10:
                self.hello_issue()
            if n == 16:
                self.hello_check()
            k("s_waitcnt lgkmcnt(0)")
            late = (n == 17 and self.o.get("late_last", 1))
            if late:
                for m in mfmas(n):
                    k(m)
                k("s_barrier")
                for r in reads(n + 1):
                    k(r)
                continue
            if n % 2 == 1:
                k("s_barrier")
            side = reads(n + 1) if n < 19 else [f"ds_read_b64 {vr(144 + 2*m, 2)}, v8 offset:{m*128}" for m in range(7)]
            interleave(k, mfmas(n), side)
        self.ts(12)
        k("s_waitcnt lgkmcnt(0)")
        k(f"s_mov_b32 s48, {f2u(QSCALE):#x}")
        for m in range(1, 7):
            k(f"v_mul_f32 v{172 + m - 1}, s48, v{144 + 2*m}")
        for mat in range(3):
            for r in range(4):
                k(f"v_mov_b32_dpp v{160 + 4*mat + r}, v{acc(mat, 6) + r} row_newbcast:15 row_mask:0xf bank_mask:0xf")

        def conv(mat, m):
            a, st, cs = acc(mat, m), 144 + 2 * m, 160 + 4 * mat
            o = [f"v_pk_fma_f32 {vr(a + 2*q, 2)}, {vr(cs + 2*q, 2)}, {vr(st, 2)}, {vr(a + 2*q, 2)} op_sel:[0,1,0] op_sel_hi:[1,1,1]" for q in range(2)]
            if mat == 0:
                qs = 172 + m - 1
                sel = "op_sel_hi:[1,0]" if qs % 2 == 0 else "op_sel:[0,1] op_sel_hi:[1,1]"
                o += [f"v_pk_mul_f32 {vr(a + 2*q, 2)}, {vr(a + 2*q, 2)}, {vr(qs & ~1, 2)} {sel}" for q in range(2)]
            else:
                o += [f"v_pk_mul_f32 {vr(a + 2*q, 2)}, {vr(a + 2*q, 2)}, {vr(st, 2)} op_sel_hi:[1,0]" for q in range(2)]
            o += [f"v_cvt_pk_bf16_f32 v{a}, v{a}, v{a+1}", f"v_cvt_pk_bf16_f32 v{a+1}, v{a+2}, v{a+3}"]
            return o

        def wr_img(mat, m):
            return f"ds_write_b64 v9, {vr(acc(mat, m), 2)} offset:{m*8*RS + mat*160}"

        def body(export):
            for p in range(0, 20, 2):
                c0, c1 = conv(*tiles[p]), conv(*tiles[p + 1])
                for x, y in zip(c0, c1):
                    k(x)
                    k(y)
                for (mat, m) in tiles[p:p + 2]:
                    if export:
                        k(f"buffer_store_dwordx2 {vr(acc(mat, m), 2)}, v10, {SWS}, s{73+mat} offen offset:{m*256}")
                    elif m < 6:
                        k(wr_img(mat, m))
            if export:
                for (mat, m) in tiles:
                    if m < 6:
                        k(wr_img(mat, m))
            k("s_mov_b32 s48, 0x00ff00ff\ns_mov_b32 s49, s48\ns_mov_b64 exec, s[48:49]")
            for mat in range(3):
                k(wr_img(mat, 6))
            k("s_mov_b64 exec, -1")

        lexp = k.lab("L_exp")
        k(f"s_cmp_eq_u32 s76, 1\ns_cbranch_scc1 {lexp}")
        body(False)
        k("s_branch L_attn")
        k(f"{lexp}:")
        body(True)
        self.signal(0, byte_is_wave=False)

    def wfrag_addr(self, xorj):
        k = self.k
        k("v_lshrrev_b32 v57, 3, v1\nv_and_b32 v57, 3, v57")
        xorj()
        k("v_lshlrev_b32 v57, 5, v57\nv_and_b32 v58, 3, v1\nv_lshl_add_u32 v57, v58, 3, v57")
        k("v_lshrrev_b32 v58, 2, v2\nv_lshl_add_u32 v58, v3, 3, v58\nv_lshl_add_u32 v57, v58, 7, v57")

    def attention(self):
        k = self.k
        k("L_attn:")
        k("s_waitcnt lgkmcnt(0)\ns_barrier")
        self.ts(13)
        noimp, sig = k.lab("L_noimp"), k.lab("L_asig")
        k(f"s_cmp_eq_u32 s68, 0\ns_cbranch_scc1 {sig}")
        k(f"s_cmp_eq_u32 s69, 0\ns_cbranch_scc1 {noimp}")
        k(f"v_mov_b32 v57, v61\ns_lshl_b32 s48, s70, 3\ns_add_u32 s48, s48, {FLAGS}\nv_mov_b32 v61, s48\ns_mov_b64 exec, 1")
        self.poll(0, False, want=1)
        k("v_mov_b32 v61, v57\ns_bfm_b64 exec, 52, 0")
        for mat in range(3):
            k(f"buffer_load_dwordx4 {vr(64 + 4*mat, 4)}, v250, {SWS}, 0 offen offset:{mat*1792} sc1")
        for mat in range(3):
            k(f"s_waitcnt vmcnt({2-mat})")
            k(f"ds_write2_b64 v251, {vr(64 + 4*mat, 2)}, {vr(66 + 4*mat, 2)} offset0:{mat*20} offset1:{mat*20+1}")
        k("s_mov_b64 exec, -1")
        k(f"{noimp}:")
        self.ts(14)
        Q = lambda b: 64 + 4 * b
        KK = lambda c: 76 + 4 * c
        V1, V2 = 92, 100
        Sx = lambda b: 120 + 8 * b
        P = lambda b: 144 + 4 * b
        O1 = lambda b: 156 + 4 * b
        O2 = lambda b: 168 + 4 * b
        L = lambda b: 180 + 4 * b
        M = lambda b: 196 + 2 * b
        BL = 16 * RS
        rd = []
        for c in range(4):
            a1, a2 = (240, 241) if c < 3 else (242, 243)
            rd.append(f"ds_read_b64 {vr(KK(c), 2)}, v{a1} offset:{c*BL + 160}")
            rd.append(f"ds_read_b64 {vr(KK(c)+2, 2)}, v{a2} offset:{c*BL + 160}")
            if c < 3:
                rd.append(f"ds_read_b64 {vr(Q(c), 2)}, v240 offset:{c*BL + 8*RS}")
                rd.append(f"ds_read_b64 {vr(Q(c)+2, 2)}, v241 offset:{c*BL + 8*RS}")
        for r in rd:
            k(r)
        k("v_cmp_eq_u32 vcc, 0, v3")
        k("s_waitcnt lgkmcnt(0)")
        for c in range(4):
            a = 244 if c < 3 else 245
            k(f"ds_read_b64_tr_b16 {vr(V1 + 2*c, 2)}, v{a} offset:{c*BL + 320}")
            k(f"ds_read_b64_tr_b16 {vr(V2 + 2*c, 2)}, v{a} offset:{c*BL + 352}")
        for b in range(3):
            k(f"v_cndmask_b32 v{Q(b)+2}, 0, v{Q(b)+2}, vcc\nv_cndmask_b32 v{Q(b)+3}, 0, v{Q(b)+3}, vcc")
        for b in range(3):
            k(f"v_mfma_f32_16x16x32_bf16 {vr(Sx(b), 4)}, {vr(KK(b), 4)}, {vr(Q(b), 4)}, {vr(232 if b == 0 else 224, 4)}")
            k(f"v_mfma_f32_16x16x32_bf16 {vr(Sx(b)+4, 4)}, {vr(KK(b+1), 4)}, {vr(Q(b), 4)}, v[228:231]")
        B3 = range(3)
        for b in B3:
            k(f"v_max3_f32 v{M(b)}, v{Sx(b)}, v{Sx(b)+1}, v{Sx(b)+2}")
        for b in B3:
            k(f"v_max3_f32 v{M(b)+1}, v{Sx(b)+3}, v{Sx(b)+4}, v{Sx(b)+5}")
        for b in B3:
            k(f"v_max3_f32 v{M(b)}, v{M(b)}, v{Sx(b)+6}, v{Sx(b)+7}")
        for b in B3:
            k(f"v_max_f32 v{M(b)}, v{M(b)}, v{M(b)+1}")
        for sw in ("v_permlane32_swap_b32", "v_permlane16_swap_b32"):
            for b in B3:
                k(f"v_mov_b32 v{M(b)+1}, v{M(b)}")
            for b in B3:
                k(f"{sw} v{M(b)+1}, v{M(b)}")
            for b in B3:
                k(f"v_max_f32 v{M(b)}, v{M(b)}, v{M(b)+1}")
        for b in B3:
            for q in range(4):
                k(f"v_pk_add_f32 {vr(Sx(b)+2*q, 2)}, {vr(Sx(b)+2*q, 2)}, {vr(M(b), 2)} op_sel_hi:[1,0] neg_lo:[0,1] neg_hi:[0,1]")
            for q in range(8):
                k(f"v_exp_f32 v{Sx(b)+q}, v{Sx(b)+q}")
            for q in range(4):
                k(f"v_cvt_pk_bf16_f32 v{P(b)+q}, v{Sx(b)+2*q}, v{Sx(b)+2*q+1}")
            if b == 0:
                k("s_waitcnt lgkmcnt(0)")
            k(f"v_mfma_f32_16x16x32_bf16 {vr(L(b), 4)}, v[236:239], {vr(P(b), 4)}, 0")
            k(f"v_mfma_f32_16x16x32_bf16 {vr(O1(b), 4)}, {vr(V1 + 2*b, 4)}, {vr(P(b), 4)}, 0")
            k(f"v_mfma_f32_16x16x32_bf16 {vr(O2(b), 4)}, {vr(V2 + 2*b, 4)}, {vr(P(b), 4)}, 0")
        for b in B3:
            k(f"v_rcp_f32 v{L(b)}, v{L(b)}")
            for o in (O1(b), O2(b)):
                for q in range(2):
                    k(f"v_pk_mul_f32 {vr(o+2*q, 2)}, {vr(o+2*q, 2)}, {vr(L(b), 2)} op_sel_hi:[1,0]")
            for o in (O1(b), O2(b)):
                k(f"v_cvt_pk_bf16_f32 v{o}, v{o}, v{o+1}\nv_cvt_pk_bf16_f32 v{o+1}, v{o+2}, v{o+3}")
            k(f"buffer_store_dwordx2 {vr(O1(b), 2)}, v{246 if b < 2 else 247}, {SWS}, 0 offen offset:{b*256}")
            k(f"buffer_store_dwordx2 {vr(O2(b), 2)}, v{248 if b < 2 else 249}, {SWS}, 0 offen offset:{b*256}")
        k(f"{sig}:")
        self.ts(15)
        self.signal(1)
        self.ts(16)
        k("s_cmp_eq_u32 s3, 1\ns_cbranch_scc1 L_ld_p2")

    WIN = (0, 98304)

    def gemm88(self, nst, wslot, tsbase):
        k = self.k
        acc = lambda i, a: 64 + 8 * i + 4 * a

        def reads(s):
            st = 88 + 40 * (s % 2)
            w = wslot(s)
            win = 1 if w >= self.WIN[1] else 0
            r = []
            for ks in range(2):
                for a in range(2):
                    for h in range(2):
                        r.append(f"ds_read_b64_tr_b16 {vr(st + 20*ks + 12 + 4*a + 2*h, 2)}, v{40 + 2*win + a} offset:{w - self.WIN[win] + ks*4096 + h*512}")
                for i in range(3):
                    r.append(f"ds_read_b128 {vr(st + 20*ks + 4*i, 4)}, v44 offset:{A2S(s % 4) - A2S(0) + ks*1408 + i*256}")
            return r

        def mfmas(s):
            st = 88 + 40 * (s % 2)
            return [f"v_mfma_f32_16x16x32_bf16 {vr(acc(i, a), 4)}, {vr(st + 20*ks + 12 + 4*a, 4)}, {vr(st + 20*ks + 4*i, 4)}, {vr(acc(i, a), 4)}"
                    for ks in range(2) for i in range(3) for a in range(2)]

        for s in range(nst):
            if s == nst - 1 and self.o.get("late_last", 1):
                for m in mfmas(s - 1):
                    k(m)
                k("s_barrier")
                for r in reads(s):
                    k(r)
            else:
                k("s_barrier")
                if s == 0:
                    self.ts(tsbase)
                    for r in reads(0):
                        k(r)
                else:
                    rr = reads(s)
                    k(rr[0])
                    k(rr[1])
                    interleave(k, mfmas(s - 1), rr[2:])
            k("s_waitcnt lgkmcnt(0)")
        return mfmas(nst - 1)

    def unpack_acc(self, src):
        k = self.k
        for i in range(3):
            for a in range(2):
                for q in range(2):
                    d, s = 64 + 8 * i + 4 * a + 2 * q, src + 4 * i + 2 * a + q
                    k(f"v_lshlrev_b32 v{d}, 16, v{s}\nv_and_b32 v{d+1}, 0xffff0000, v{s}")

    def comp_p2(self):
        k = self.k
        k(f"s_and_b32 s64, {sW}, 1\ns_lshr_b32 s65, {sW}, 1\ns_lshl_b32 s48, s64, 1")
        self.wfrag_addr(lambda: k("v_xor_b32 v57, s48, v57"))
        k(f"v_mov_b32 v40, v57\nv_xor_b32 v41, 32, v57\nv_add_u32 v42, {self.WIN[1]}, v40\nv_add_u32 v43, {self.WIN[1]}, v41")
        k("s_mul_i32 s66, s65, 48\nv_add_u32 v45, s66, v2")
        k(f"s_movk_i32 s48, 176\nv_mad_u32_u24 v57, v3, s48, v45\nv_lshlrev_b32 v57, 4, v57\nv_add_u32 v44, {A2S(0)}, v57")
        k("s_lshl_b32 s48, s64, 2\nv_lshrrev_b32 v57, 1, v3\nv_or_b32 v57, s48, v57\nv_and_b32 v58, 7, v2\nv_xor_b32 v57, v57, v58")
        k(f"v_lshlrev_b32 v57, 4, v57\nv_and_b32 v58, 1, v3\nv_lshl_add_u32 v57, v58, 3, v57\nv_lshl_add_u32 v46, v45, 7, v57\nv_xor_b32 v47, 32, v46")
        k(f"s_lshl_b32 s48, {sJ}, 1\ns_add_u32 s48, s48, s64\ns_mul_i32 s50, {sT}, 88")
        k(f"s_lshl_b32 s49, s48, 14\ns_lshl_b32 s51, s50, 4\ns_add_u32 s49, s49, s51\ns_add_u32 s49, s49, {HBUF}")
        k("v_lshlrev_b32 v57, 4, v45\nv_lshl_add_u32 v57, v3, 12, v57\nv_add_u32 v48, s49, v57")
        k(f"s_lshl_b32 s67, {sNP}, 1\ns_sub_u32 s51, s67, 32\nv_cmp_gt_u32 vcc, s51, v45\nv_mov_b32 v58, {OOB:#x}\nv_cndmask_b32 v49, v58, v48, vcc")
        k(f"s_lshl_b32 s49, s48, 8\ns_add_u32 s49, s49, s50\ns_lshl_b32 s49, s49, 3\ns_add_u32 s49, s49, {STAT2}")
        k("v_lshl_add_u32 v57, v45, 3, s49\nv_lshrrev_b32 v59, 2, v2\nv_cmp_eq_u32 s[48:49], v59, v3\nv_cndmask_b32 v50, v58, v57, s[48:49]\nv_cndmask_b32 v51, v58, v50, vcc")
        for q, mk in enumerate((0x22222222, 0x44444444, 0x88888888)):
            k(f"s_mov_b32 s{56+2*q}, {mk:#x}\ns_mov_b32 s{57+2*q}, {mk:#x}")
        k("s_barrier")
        self.ts(21)
        for i in range(3):
            for a in range(2):
                k(f"ds_read_b64 {vr(168 + 4*i + 2*a, 2)}, v{46+a} offset:{XRES + i*2048}")
        k("s_waitcnt lgkmcnt(0)")
        self.unpack_acc(168)
        last = self.gemm88(10, lambda s: WOP[s], 22)
        k("s_barrier")
        for m in last:
            k(m)
        self.ts(23)
        for i in range(3):
            for a in range(2):
                s = 64 + 8 * i + 4 * a
                k(f"v_cvt_pk_bf16_f32 v{240 + 4*i + 2*a}, v{s}, v{s+1}\nv_cvt_pk_bf16_f32 v{241 + 4*i + 2*a}, v{s+2}, v{s+3}")
            k(f"buffer_store_dwordx4 {vr(240 + 4*i, 4)}, v{48 if i < 2 else 49}, {SWS}, 0 offen offset:{i*256}")
            k(f"v_mfma_f32_16x16x32_bf16 {vr(88 + 8*i, 4)}, v[236:239], {vr(240 + 4*i, 4)}, 0")
            k(f"v_mfma_f32_16x16x32_bf16 {vr(92 + 8*i, 4)}, {vr(240 + 4*i, 4)}, {vr(240 + 4*i, 4)}, 0")
        for i in range(3):
            g = 92 + 8 * i
            k(f"v_cndmask_b32 v{g}, v{g}, v{g+1}, s[56:57]\nv_cndmask_b32 v{g}, v{g}, v{g+2}, s[58:59]\nv_cndmask_b32 v{89 + 8*i}, v{g}, v{g+3}, s[60:61]")
            k(f"buffer_store_dwordx2 {vr(88 + 8*i, 2)}, v{50 if i < 2 else 51}, {SWS}, 0 offen offset:{i*128}")
        self.signal(2)
        self.ts(24)

    def comp_p3(self):
        k = self.k
        k("L_comp_p3:")
        k(f"s_and_b32 s64, {sW}, 1\ns_lshr_b32 s65, {sW}, 1")
        k("v_lshrrev_b32 v57, 2, v1\ns_movk_i32 s48, 192\nv_mul_u32_u24 v57, s48, v57\nv_and_b32 v58, 3, v1\nv_lshl_add_u32 v57, v58, 3, v57\nv_and_b32 v58, 1, v3")
        for a in range(3):
            k(f"s_cmp_eq_u32 s64, 0\ns_cselect_b32 s48, {a}, {(4, 5, 3)[a]}\nv_xor_b32 v59, s48, v58\nv_lshl_add_u32 v{4+a}, v59, 5, v57\nv_add_u32 v{7+a}, 106496, v{4+a}")
        k(f"s_lshl_b32 s48, s65, 6\nv_add_u32 v57, s48, v2\nv_lshl_add_u32 v58, v3, 7, v57\nv_lshlrev_b32 v58, 4, v58\nv_add_u32 v10, {A3S(0)}, v58")
        k(f"v_lshlrev_b32 v11, 4, v57\nv_add_u32 v11, {STAT3}, v11")
        k(f"s_and_b32 s48, {sR}, 15\ns_mul_i32 s48, s48, 3\ns_lshr_b32 s49, {sR}, 4\ns_lshl_b32 s49, s49, 11")
        k("v_lshlrev_b32 v57, 4, v57\nv_lshl_add_u32 v57, v3, 12, v57\nv_add_u32 v57, s49, v57")
        k("s_lshl_b32 s49, s64, 1\ns_add_u32 s49, s49, s48\ns_lshl_b32 s49, s49, 14\nv_add_u32 v52, s49, v57")
        k("s_add_u32 s49, s48, 1\ns_lshl_b32 s49, s49, 14\ns_lshl_b32 s50, s64, 3\ns_add_u32 s49, s49, s50\nv_add_u32 v53, s49, v57")
        for r in range(4):
            k(f"v_mov_b32 v{36+r}, 0x3f803f80")
        acc = lambda i, mat, a: 64 + 24 * i + 12 * mat + 4 * a
        cs = lambda mat, a: 12 + 12 * mat + 4 * a

        def reads(n):
            i, s = n // 2, n % 2
            st = 160 + 40 * (n % 2)
            w = W3S[i % 4]
            wb, wo_ = (7, w - 106496) if w >= 106496 else (4, w)
            wr = [f"ds_read_b64_tr_b16 {vr(st + 16 + 12*mat + 4*a + 2*h, 2)}, v{wb+a} offset:{wo_ + mat*12288 + s*6144 + h*3072}"
                  for mat in range(2) for a in range(3) for h in range(2)]
            ar = [f"ds_read_b128 {vr(st + 4*m, 4)}, v10 offset:{A3S(i % 3) - A3S(0) + s*8192 + m*256}" for m in range(4)]
            return ar[:1] + wr[:6] + ar[1:] + wr[6:]

        def mfmas(n):
            st = 160 + 40 * (n % 2)
            o = []
            for mat in range(2):
                for m in range(4):
                    for a in range(3):
                        o.append(f"v_mfma_f32_16x16x32_bf16 {vr(acc(m, mat, a), 4)}, {vr(st + 16 + 12*mat + 4*a, 4)}, {vr(st + 4*m, 4)}, "
                                 + ("0" if n == 0 else vr(acc(m, mat, a), 4)))
                for a in range(3):
                    o.append(f"v_mfma_f32_16x16x32_bf16 {vr(cs(mat, a), 4)}, {vr(st + 16 + 12*mat + 4*a, 4)}, v[36:39], "
                             + ("0" if n == 0 else vr(cs(mat, a), 4)))
            return o

        k("s_barrier")
        self.ts(25)
        k("s_barrier")
        self.ts(26)
        for r in reads(0):
            k(r)
        for n in range(20):
            k("s_waitcnt lgkmcnt(0)")
            if n % 2 == 1:
                k("s_barrier")
            side = reads(n + 1) if n < 19 else [f"ds_read_b128 {vr(160 + 4*m, 4)}, v11 offset:{m*256}" for m in range(4)]
            interleave(k, mfmas(n), side)
        self.ts(36)
        k("s_waitcnt lgkmcnt(0)")
        T = 176

        def pair(m, a, t, dst):
            G, U, st = acc(m, 0, a), acc(m, 1, a), 160 + 4 * m
            o = []
            for q in range(2):
                o.append(f"v_pk_fma_f32 {vr(G+2*q, 2)}, {vr(cs(0, a)+2*q, 2)}, {vr(st, 2)}, {vr(G+2*q, 2)} op_sel_hi:[1,0,1]")
            for q in range(2):
                o.append(f"v_pk_mul_f32 {vr(t+2*q, 2)}, {vr(G+2*q, 2)}, {vr(st, 2)} op_sel:[0,1] op_sel_hi:[1,1]")
            for q in range(4):
                o.append(f"v_exp_f32 v{t+q}, v{t+q}")
            for q in range(2):
                o.append(f"v_pk_fma_f32 {vr(U+2*q, 2)}, {vr(cs(1, a)+2*q, 2)}, {vr(st, 2)}, {vr(U+2*q, 2)} op_sel_hi:[1,0,1]")
            for q in range(2):
                o.append(f"v_pk_fma_f32 {vr(t+2*q, 2)}, {vr(t+2*q, 2)}, {vr(st+2, 2)}, {vr(st+2, 2)} op_sel_hi:[1,0,0]")
            for q in range(2):
                o.append(f"v_pk_mul_f32 {vr(G+2*q, 2)}, {vr(G+2*q, 2)}, {vr(U+2*q, 2)}")
            for q in range(4):
                o.append(f"v_rcp_f32 v{t+q}, v{t+q}")
            for q in range(2):
                o.append(f"v_pk_mul_f32 {vr(G+2*q, 2)}, {vr(G+2*q, 2)}, {vr(t+2*q, 2)}")
            o.append(f"v_cvt_pk_bf16_f32 v{dst}, v{G}, v{G+1}")
            o.append(f"v_cvt_pk_bf16_f32 v{dst+1}, v{G+2}, v{G+3}")
            return o

        for m in range(4):
            dst = 200 + 8 * m
            ps = [pair(m, a, T + 4 * a, dst + 2 * a) for a in range(3)]
            for x in zip(*ps):
                for y in x:
                    k(y)
            k(f"buffer_store_dwordx4 {vr(dst, 4)}, v52, {SWS}, 0 offen offset:{m*256}")
            k(f"buffer_store_dwordx2 {vr(dst+4, 2)}, v53, {SWS}, 0 offen offset:{m*256}")
        self.ts(37)
        self.signal(3)
        self.ts(38)
        k(f"s_cmp_ge_u32 {sR}, 30\ns_cbranch_scc1 L_fin")

    def comp_p4(self):
        k = self.k
        self.unpack_acc(240)
        k("v_lshrrev_b32 v56, 2, v1\nv_and_b32 v55, 3, v1")
        k(f"s_lshl_b32 s48, {sJ}, 7\ns_lshl_b32 s49, s64, 6\ns_add_u32 s48, s48, s49\nv_lshl_add_u32 v54, v55, 4, s48")
        k(f"v_mov_b32 v60, {OOB:#x}\ns_sub_u32 s49, s67, 1\ns_movk_i32 s50, 1280")
        for i in range(3):
            k(f"s_add_u32 s48, s66, {16*i}\nv_add_u32 v57, s48, v56\nv_lshlrev_b32 v58, 1, v57\nv_subrev_u32 v59, s49, v58")
            k(f"v_cmp_gt_u32 vcc, {sNP}, v57\nv_cndmask_b32 v58, v59, v58, vcc\nv_add_u32 v58, {sROW}, v58\nv_mad_u32_u24 v58, v58, s50, v54")
            k(f"v_cmp_gt_u32 vcc, s67, v57\nv_cndmask_b32 v{46+i}, v60, v58, vcc")
        k(f"s_mul_i32 s48, {sW}, 1280\ns_add_u32 s48, s48, {OUTST}\ns_movk_i32 s49, 80")
        k("v_lshl_add_u32 v57, v3, 3, s48\nv_mad_u32_u24 v49, v2, s49, v57\nv_lshl_add_u32 v57, v55, 4, s48\nv_mad_u32_u24 v50, v56, s49, v57")
        k("s_barrier")
        self.ts(39)
        last = self.gemm88(24, lambda s: W4P[s % 13], 40)
        for m in last:
            k(m)
        self.ts(41)
        for i in range(3):
            for a in range(2):
                s = 64 + 8 * i + 4 * a
                k(f"v_cvt_pk_bf16_f32 v{s}, v{s}, v{s+1}\nv_cvt_pk_bf16_f32 v{s+1}, v{s+2}, v{s+3}")
            k(f"ds_write2_b64 v49, {vr(64 + 8*i, 2)}, {vr(68 + 8*i, 2)} offset0:0 offset1:4")
            k(f"ds_read_b128 {vr(88 + 4*i, 4)}, v50")
        for i in range(3):
            k(f"s_waitcnt lgkmcnt({2*(2-i)})")
            k(f"buffer_store_dwordx4 {vr(88 + 4*i, 4)}, v{46+i}, {SOUT}, 0 offen")
        if self.o.get("ts"):
            k("s_waitcnt vmcnt(0)")
        self.ts(42)

    def comp_helper(self):
        k = self.k
        k("L_comp_helper:")
        self.hello_issue()
        self.hello_check()
        k("s_waitcnt lgkmcnt(0)\ns_barrier")
        k("s_branch L_comp_p3")

    def build(self):
        k = self.k
        self.prologue()
        self.loader_p1()
        self.loader_rest()
        self.loader_helper()
        self.comp_helper()
        self.comp_p1()
        self.attention()
        self.comp_p2()
        self.comp_p3()
        self.comp_p4()
        k("L_fin:")
        self.ts_flush()
        k("L_end:\ns_endpgm")
        body = k.finalize()
        kn = NAME + "_kernel"
        return (HDR + "; One persistent launch: 256 workgroups (8 groups of 32), 4 MFMA waves + 4 loader waves each.\n"
                "; @launch grid=(256,1,1) block=(512,1,1) lds=163840\n"
                '.amdgcn_target "amdgcn-amd-amdhsa--gfx950"\n.text\n'
                f".globl {kn}\n.p2align 8\n.type {kn},@function\n{kn}:\n" + body +
                '.section .rodata,"a"\n.p2align 6\n'
                f".amdhsa_kernel {kn}\n  .amdhsa_next_free_vgpr 256\n  .amdhsa_next_free_sgpr 96\n  .amdhsa_accum_offset 256\n"
                "  .amdhsa_group_segment_fixed_size 0\n  .amdhsa_kernarg_size 80\n  .amdhsa_user_sgpr_count 2\n"
                "  .amdhsa_user_sgpr_kernarg_segment_ptr 1\n  .amdhsa_system_sgpr_workgroup_id_x 1\n"
                "  .amdhsa_float_denorm_mode_32 3\n.end_amdhsa_kernel\n")


if __name__ == "__main__":
    out = sys.argv[1]
    opt = {}
    for a in sys.argv[2:]:
        kk, vv = a.split("=")
        opt[kk] = int(vv)
    g = Gen(opt)
    open(out, "w").write(g.build())
    print(f"wrote {out}: {len(g.k.ins)} lines, {g.k.nops} hazard nops")
```

```python
import sys, struct
from asmfw import K, VM

NAME = "sequential_preLN__sliding_local_dilated__glu_gated_swiglu__prompt"
HDR = open(f"cdna_kernels/{NAME}.s.ref").read().split("; Override launch")[0]

GS = 2 << 20
OBUF = 0
HBUF = 786432
STAT2 = HBUF + 327680
EXPB = STAT2 + 40960
FLAGS = EXPB + 32 * 5376
TSB = FLAGS + 1024
XS = lambda s: s * 14336
W1S = lambda s: 57344 + s * 24576
MISC = 155648
STAT1 = MISC
PUREW = MISC + 896
STAT3 = MISC + 1024
OUTST = MISC + 3072
IMG, RS, PB = 53248, 496, 52 * 496 + 8
WOP = [106496 + 8192 * i for i in range(6)] + [28672 + 8192 * i for i in range(3)] + [0]
XRES = 14336
A2S = lambda s: 53248 + s * 11264
W3S = [106496, 131072, 0, 24576]
A3S = lambda s: 49152 + s * 16384
W4P = [8192 * i for i in range(6)] + [106496 + 8192 * i for i in range(6)] + [98304]
OOB = 0x80000000
SPIN = 200000

f2u = lambda x: struct.unpack("<I", struct.pack("<f", x))[0]
LOG2E = 1.4426950408889634
QSCALE = (20 ** -0.5) * LOG2E

SX, SWQ, SWO, SW1, SW3, SW2, SOUT, SWS, SDBG = ("s[4:7]", "s[8:11]", "s[12:15]", "s[16:19]", "s[20:23]",
                                                "s[24:27]", "s[28:31]", "s[32:35]", "s[36:39]")
sW, sG, sR, sT, sJ, sJM, sLW, sSLOW = "s40", "s41", "s42", "s43", "s44", "s45", "s46", "s47"
sNP, sFLAG, sROW, sXCC = "s54", "s55", "s62", "s63"


def vr(a, n=1):
    return f"v{a}" if n == 1 else f"v[{a}:{a+n-1}]"


def interleave(k, main, side, first=1, every=1):
    si = 0
    for i, m in enumerate(main):
        k(m)
        if i + 1 >= first and (i + 1 - first) % every == 0 and si < len(side):
            k(side[si])
            si += 1
    while si < len(side):
        k(side[si])
        si += 1


class Gen:
    def __init__(self, opt):
        self.o = opt
        self.k = K()
        self.nts = {"c": 0, "l": 0}

    def ts(self, n):
        if "pb" in self.o:
            if n == self.o.get("pa", -1):
                self.k("s_memrealtime s[88:89]\ns_waitcnt lgkmcnt(0)")
            if n == self.o["pb"]:
                self.k("s_memrealtime s[90:91]\ns_waitcnt lgkmcnt(0)")
        if not self.o.get("ts"):
            return
        self.k(f"s_memtime s[84:85]\ns_waitcnt lgkmcnt(0)\nv_writelane_b32 v63, s84, {n}")

    def ts_flush(self):
        if "pb" in self.o:
            k = self.k
            k(f"s_cmp_lg_u32 {sW}, {self.o.get('pw', 0)}\ns_cbranch_scc1 L_end\ns_cmp_ge_u32 {sR}, 30\ns_cbranch_scc1 L_end")
            k("s_sub_u32 s48, s90, s88\ns_mul_i32 s48, s48, 10\ns_min_u32 s48, s48, 100000\ns_memrealtime s[88:89]\ns_waitcnt lgkmcnt(0)")
            k("L_spin:\ns_memrealtime s[90:91]\ns_waitcnt lgkmcnt(0)\ns_sub_u32 s49, s90, s88\ns_cmp_lt_u32 s49, s48\ns_cbranch_scc1 L_spin")
        if not self.o.get("ts"):
            return
        k = self.k
        skip = k.lab("L_tsskip")
        k(f"s_and_b32 s48, {sW}, 3\ns_cmp_lg_u32 s48, 0\ns_cbranch_scc1 {skip}")
        k(f"s_memrealtime s[84:85]\ns_waitcnt lgkmcnt(0)\nv_writelane_b32 v63, s84, 62\nv_writelane_b32 v63, {sXCC}, 63")
        k(f"s_lshl_b32 s48, {sR}, 9\ns_lshr_b32 s49, {sW}, 2\ns_lshl_b32 s49, s49, 8\ns_add_u32 s48, s48, s49\ns_add_u32 s48, s48, {TSB}")
        k(f"v_lshlrev_b32 v62, 2, v1\nbuffer_store_dword v63, v62, {SWS}, s48 offen")
        k(f"{skip}:")

    def signal(self, kind, byte_is_wave=True):
        k = self.k
        fast, done = k.lab("L_sigf"), k.lab("L_sigd")
        k("v_mov_b32 v60, 1")
        if byte_is_wave:
            k(f"s_add_u32 s48, {sFLAG}, {sW}")
        else:
            k(f"s_mov_b32 s48, {sFLAG}")
        k(f"s_cmp_eq_u32 {sSLOW}, 0")
        k("s_mov_b64 exec, 1")
        k("s_waitcnt vmcnt(0)")
        k(f"s_cbranch_scc1 {fast}")
        k("buffer_wbl2 sc1\ns_waitcnt vmcnt(0)")
        k(f"buffer_store_byte v60, off, {SWS}, s48 offset:{kind*256} sc1")
        k(f"s_branch {done}")
        k(f"{fast}:")
        k(f"buffer_store_byte v60, off, {SWS}, s48 offset:{kind*256}")
        k(f"{done}:")
        k("s_mov_b64 exec, -1")

    def poll(self, kind, both, want=0x01010101):
        k = self.k
        loop, out, done = k.lab("L_poll"), k.lab("L_pollo"), k.lab("L_polld")
        k(f"s_mov_b32 s48, 0\ns_mov_b32 s49, {want}")
        k(f"{loop}:")
        if both:
            k(f"buffer_load_dwordx2 v[58:59], v61, {SWS}, 0 offen offset:{kind*256} sc1")
        else:
            k(f"buffer_load_dword v58, v61, {SWS}, 0 offen offset:{kind*256} sc1")
        k(f"s_add_u32 s48, s48, 1\ns_cmp_gt_u32 s48, {SPIN}\ns_cbranch_scc1 {out}")
        k("s_waitcnt vmcnt(0)")
        if both:
            k("v_and_b32 v58, v58, v59")
        k("v_cmp_ne_u32 vcc, s49, v58")
        k(f"s_cbranch_vccnz {loop}")
        k(f"{out}:")
        k(f"s_cmp_eq_u32 {sSLOW}, 0\ns_cbranch_scc1 {done}")
        k("buffer_inv sc1\ns_waitcnt vmcnt(0)")
        k(f"{done}:")
        k("s_mov_b64 exec, -1")

    def hello_issue(self):
        self.k(f"s_lshl_b32 s48, {sG}, 5\nbuffer_load_dword v11, off, {SDBG}, s48 sc1")

    def hello_check(self):
        k = self.k
        loop, ok = k.lab("L_hl"), k.lab("L_hok")
        k("s_mov_b32 s50, 0")
        k(f"{loop}:")
        k("s_waitcnt vmcnt(0)\nv_readfirstlane_b32 s49, v11")
        k(f"s_add_u32 s50, s50, 1\ns_and_b32 s51, s49, 0xff\ns_cmp_eq_u32 s51, 32\ns_cbranch_scc1 {ok}")
        k(f"s_cmp_gt_u32 s50, {SPIN}\ns_cbranch_scc1 {ok}")
        k("s_sleep 4")
        self.hello_issue()
        k(f"s_branch {loop}")
        k(f"{ok}:")
        k(f"s_mul_i32 s50, {sXCC}, {sXCC}\ns_lshl_b32 s50, s50, 16\ns_lshl_b32 s51, {sXCC}, 8\ns_add_u32 s50, s50, s51")
        k("s_add_u32 s50, s50, 1\ns_lshl_b32 s50, s50, 5")
        k(f"s_cmp_lg_u32 s50, s49\ns_cselect_b32 {sSLOW}, 1, 0")
        if self.o.get("force_slow"):
            k(f"s_mov_b32 {sSLOW}, 1")
        k(f"v_mov_b32 v11, {sSLOW}\nv_mov_b32 v60, {PUREW}\nds_write_b32 v60, v11")

    def read_pure(self):
        k = self.k
        k(f"v_mov_b32 v60, {PUREW}\nds_read_b32 v60, v60\ns_waitcnt lgkmcnt(0)\nv_readfirstlane_b32 {sSLOW}, v60")

    def prologue(self):
        k = self.k
        k("s_cmp_ge_u32 s2, 256\ns_cbranch_scc1 L_end")
        k("s_load_dwordx16 s[64:79], s[0:1], 0\ns_load_dwordx4 s[80:83], s[0:1], 64")
        if self.o.get("ts"):
            k("s_memrealtime s[86:87]\ns_memtime s[84:85]")
        if "pb" in self.o:
            k("s_memrealtime s[88:89]\ns_memrealtime s[90:91]")
        k("v_lshrrev_b32 v1, 6, v0")
        if self.o.get("perm"):
            k(f"s_lshr_b32 {sG}, s2, 5\ns_and_b32 {sR}, s2, 31")
        else:
            k(f"s_and_b32 {sG}, s2, 7\ns_lshr_b32 {sR}, s2, 3")
        k(f"v_readfirstlane_b32 {sW}, v1")
        k("v_and_b32 v1, 63, v0\nv_and_b32 v2, 15, v0\nv_lshrrev_b32 v3, 4, v1")
        k(f"s_mul_i32 {sT}, {sR}, 26\ns_lshr_b32 {sT}, {sT}, 8\ns_mul_i32 s48, {sT}, 10\ns_sub_u32 {sJ}, {sR}, s48")
        k(f"s_cmp_ge_u32 {sR}, 30\ns_cselect_b32 {sT}, 0, {sT}")
        k(f"s_sub_u32 s48, {sJ}, 5\ns_cmp_ge_u32 {sJ}, 5\ns_cselect_b32 {sJM}, s48, {sJ}")
        k(f"s_cmp_eq_u32 {sT}, 2\ns_cselect_b32 {sNP}, 40, 44")
        k(f"s_lshl_b32 {sROW}, {sG}, 8\ns_mul_i32 s48, {sT}, 88\ns_add_u32 {sROW}, {sROW}, s48")
        k(f"s_lshl_b32 {sFLAG}, {sR}, 3\ns_add_u32 {sFLAG}, {sFLAG}, {FLAGS}")
        k(f"s_getreg_b32 {sXCC}, hwreg(HW_REG_XCC_ID)\ns_and_b32 {sXCC}, {sXCC}, 7")
        k(f"s_and_b32 {sLW}, {sW}, 3\ns_lshl_b32 {sLW}, {sLW}, 10")
        k(f"s_mov_b32 {sSLOW}, 1")
        for b, n in ((4, 2621440), (8, 2457600), (12, 819200), (16, 1966080), (20, 1966080), (24, 1966080),
                     (28, 2621440), (32, GS), (36, 256)):
            k(f"s_mov_b32 s{b+2}, {n}\ns_mov_b32 s{b+3}, 0x20000")
        k(f"s_lshl_b32 s48, {sG}, 21")
        k("s_waitcnt lgkmcnt(0)")
        for b, p in ((4, 64), (8, 66), (12, 68), (16, 72), (20, 74), (24, 76), (28, 78), (36, 80)):
            k(f"s_mov_b64 s[{b}:{b+1}], s[{p}:{p+1}]")
        k("s_add_u32 s32, s82, s48\ns_addc_u32 s33, s83, 0")
        if self.o.get("ts"):
            k("v_mov_b32 v63, 0\nv_writelane_b32 v63, s84, 0\nv_writelane_b32 v63, s86, 61")
        k(f"s_cmp_lt_u32 {sW}, 4\ns_cbranch_scc1 L_comp")
        k("s_mov_b32 s3, 1")
        k(f"s_cmp_ge_u32 {sR}, 30\ns_cbranch_scc1 L_ld_helper")

    def attn_setup(self):
        k = self.k
        k(f"s_and_b32 s64, {sW}, 3\ns_lshr_b32 s65, {sW}, 2")
        k(f"s_mul_i32 s66, {sJM}, 3\ns_cmp_ge_u32 {sJM}, 3\ns_addc_u32 s66, s66, s64")
        k(f"s_mul_i32 s67, s66, 40\ns_lshl_b32 s48, {sJM}, 7\ns_sub_u32 s67, s67, s48\ns_add_u32 s67, s67, {IMG+16}")
        k(f"s_cmp_ge_u32 {sJ}, 5\ns_cselect_b32 s48, 16, 0\ns_add_u32 s66, s66, s48")
        k(f"s_mul_i32 s72, s65, {PB}\ns_add_u32 s67, s67, s72")
        k(f"s_cmp_eq_u32 {sJM}, 2\ns_cselect_b32 s48, 4, 3\ns_cmp_lt_u32 s64, s48\ns_cselect_b32 s68, 1, 0")
        k(f"s_sub_u32 s48, {sJM}, 1\ns_cmp_lt_u32 s48, 2\ns_cselect_b32 s49, 1, 0\ns_cmp_eq_u32 s64, 0\ns_cselect_b32 s49, s49, 0")
        k(f"s_sub_u32 s48, {sJM}, 2\ns_cmp_lt_u32 s48, 2\ns_cselect_b32 s50, 1, 0\ns_add_u32 s48, s64, {sJM}\ns_cmp_eq_u32 s48, 5\ns_cselect_b32 s50, s50, 0")
        k(f"s_or_b32 s69, s49, s50\ns_add_u32 s70, {sR}, s50\ns_sub_u32 s70, s70, s49\ns_mul_i32 s71, s50, 144")
        k(f"v_lshlrev_b32 v60, 2, v3\nv_sub_u32 v59, v2, v60\nv_mov_b32 v58, {f2u(-1e30):#x}")
        k(f"s_or_b32 s48, {sG}, {sT}\ns_cmp_eq_u32 s48, 0\ns_cselect_b32 s48, 8, 0")
        for r in range(4):
            k(f"v_add_u32 v57, {8-r}, v59\nv_cmp_gt_u32 vcc, 8, v57\nv_cndmask_b32 v{224+r}, v58, 0, vcc")
            k(f"v_subrev_u32 v57, {8+r}, v59\nv_cmp_gt_u32 vcc, 8, v57\nv_cndmask_b32 v{228+r}, v58, 0, vcc")
            k(f"v_add_u32 v57, {r}, v60\nv_cmp_gt_u32 vcc, s48, v57\nv_cndmask_b32 v{232+r}, v{224+r}, v58, vcc")
            k(f"v_mov_b32 v{236+r}, 0x3f803f80")
        k(f"s_movk_i32 s48, {RS}")
        k("v_mul_u32_u24 v57, s48, v2\nv_add_u32 v57, s67, v57")
        k("v_lshl_add_u32 v240, v3, 3, v57\nv_add_u32 v241, 32, v57")
        k("v_min_u32 v57, 3, v2\nv_mul_u32_u24 v57, s48, v57\nv_add_u32 v57, s67, v57")
        k("v_lshl_add_u32 v242, v3, 3, v57\nv_add_u32 v243, 32, v57")
        k("v_lshrrev_b32 v57, 2, v1\nv_and_b32 v56, 3, v1\nv_lshlrev_b32 v56, 3, v56\nv_add_u32 v56, s67, v56")
        k("v_mad_u32_u24 v244, v57, s48, v56")
        k("v_min_u32 v57, 3, v57\nv_mad_u32_u24 v245, v57, s48, v56")
        k(f"s_mul_i32 s49, {sT}, 88\ns_mul_i32 s50, {sNP}, s65\ns_add_u32 s49, s49, s50\ns_lshl_b32 s49, s49, 4")
        k("s_and_b32 s50, s66, 1\ns_lshl_b32 s50, s50, 3\ns_add_u32 s49, s49, s50")
        k(f"s_lshr_b32 s50, s66, 1\ns_lshl_b32 s51, s50, 14\ns_add_u32 s51, s51, s49")
        k("v_lshlrev_b32 v57, 4, v2\nv_lshl_add_u32 v246, v3, 12, v57\nv_add_u32 v246, s51, v246")
        k(f"s_add_u32 s50, s50, 64\ns_lshl_b32 s50, s50, 12\ns_add_u32 s50, s50, s49")
        k(f"v_add_u32 v248, s50, v57\nv_mov_b32 v58, {OOB:#x}\nv_cmp_eq_u32 vcc, 0, v3\nv_cndmask_b32 v248, v58, v248, vcc")
        k(f"s_sub_u32 s50, {sNP}, 32\nv_cmp_gt_u32 vcc, s50, v2\nv_cndmask_b32 v247, v58, v246, vcc\nv_cndmask_b32 v249, v58, v248, vcc")
        k(f"s_mul_i32 s49, s70, 5376\ns_lshl_b32 s50, s65, 4\ns_add_u32 s49, s49, s50\ns_add_u32 s49, s49, {EXPB}")
        k("v_lshlrev_b32 v250, 5, v1\nv_add_u32 v250, s49, v250")
        k(f"s_add_u32 s49, s72, s71\ns_add_u32 s49, s49, {IMG}\nv_mul_u32_u24 v251, s48, v1\nv_add_u32 v251, s49, v251")

    def ld_p1_stage(self, vm, i):
        k = self.k
        s = i % 4
        k("s_lshl_b32 s56, s50, 7\ns_mul_i32 s57, s50, 245760\ns_add_u32 s58, s57, 122880")
        for q in range(3):
            k(f"s_add_u32 m0, {sLW}, {XS(s) + q*4096}")
            vm.issue(("p1", i), f"buffer_load_dwordx4 v{6+q}, {SX}, s56 offen lds")
        k(f"s_mov_b32 m0, {XS(s) + 12288}\ns_mov_b64 exec, s[52:53]")
        vm.issue(("p1", i), f"buffer_load_dwordx4 v9, {SX}, s56 offen lds")
        k("s_mov_b64 exec, -1")
        for hf in range(2):
            for mat in range(3):
                k(f"s_add_u32 m0, {sLW}, {W1S(s) + mat*8192 + hf*4096 - mat*1280}")
                vm.issue(("p1", i), f"buffer_load_dwordx4 v10, {SWQ}, s{57+hf} offen offset:{mat*1280} lds")
        k("s_add_u32 s50, s50, 1\ns_cmp_eq_u32 s50, 10\ns_cselect_b32 s50, 0, s50")

    def ld_wo_piece(self, vm, p):
        k = self.k
        for hf in range(2):
            ks = 2 * p + hf
            if ks < 16:
                k(f"s_add_u32 s56, s73, {40*ks*1280}")
            else:
                k(f"s_add_u32 s56, s74, {160*(ks-16)*1280}")
            k(f"s_add_u32 m0, {sLW}, {WOP[p] + hf*4096}")
            vm.issue(("wo", p), f"buffer_load_dwordx4 v12, {SWO}, s56 offen lds")

    def ld_stats(self, i):
        k = self.k
        s = i % 4
        for q in range(3):
            k(f"ds_read_b128 v[{20+4*q}:{23+4*q}], v18 offset:{XS(s) + q*4096}")
        k(f"ds_read_b128 v[32:35], v19 offset:{XS(s) + 12288}")
        for q in range(4):
            k(f"s_waitcnt lgkmcnt({3-q})")
            for d in range(4):
                k(f"v_dot2c_f32_bf16 v{36+q}, v{20+4*q+d}, v44")
                k(f"v_dot2c_f32_bf16 v{40+q}, v{20+4*q+d}, v{20+4*q+d}")

    def ld_common_setup(self):
        k = self.k
        k(f"s_lshl_b32 s48, {sJ}, 7")
        k("v_lshrrev_b32 v57, 5, v1\nv_and_b32 v56, 3, v4")
        k("v_mad_u32_u24 v58, v57, 20, v56\ns_movk_i32 s49, 1280\nv_mad_u32_u24 v12, v58, s49, v13")
        k("v_lshl_add_u32 v58, v57, 4, v56\nv_mad_u32_u24 v14, v58, s49, v13")
        k("s_mul_i32 s73, s51, 5120\ns_mul_i32 s74, s51, 51200\ns_add_u32 s74, s74, 20480")
        k(f"s_mul_i32 s48, {sT}, 88\ns_lshl_b32 s49, s51, 8\ns_add_u32 s48, s48, s49\ns_lshl_b32 s48, s48, 4")
        k("v_lshl_add_u32 v15, v1, 4, s48")
        k(f"v_add_u32 v16, 1024, v15\nv_add_u32 v57, {16384 - 88*16}, v16\nv_cmp_gt_u32 vcc, 24, v1\nv_cndmask_b32 v16, v57, v16, vcc")
        k(f"v_add_u32 v17, {2048 + 16384 - 88*16}, v15")
        k("s_mul_i32 s75, s51, 2816")
        k("s_bfm_b64 s[76:77], 48, 0")
        k(f"s_and_b32 s48, {sR}, 15\ns_mul_i32 s48, s48, 192\ns_mul_i32 s49, s51, {16*3072}\ns_add_u32 s48, s48, s49")
        k("s_movk_i32 s49, 3072")
        for i in range(3):
            k(f"v_add_u32 v57, {64*i}, v1\nv_mul_u32_u24 v58, 0x1556, v57\nv_lshrrev_b32 v58, 16, v58")
            k("v_mul_u32_u24 v59, 12, v58\nv_sub_u32 v57, v57, v59")
            k("v_lshrrev_b32 v59, 1, v58\nv_and_b32 v59, 2, v59\nv_xor_b32 v57, v57, v59")
            k(f"v_lshl_add_u32 v57, v57, 4, s48\nv_mad_u32_u24 v{45+i}, v58, s49, v57")
        k("s_mul_i32 s78, s51, 3072")
        k(f"s_lshr_b32 s48, {sR}, 4\ns_lshl_b32 s49, s48, 11\ns_lshl_b32 s56, s51, 12\ns_add_u32 s49, s49, s56\ns_add_u32 s49, s49, {HBUF}")
        k("v_lshl_add_u32 v48, v1, 4, s49")
        k("s_lshl_b32 s79, s51, 11")
        k(f"s_lshl_b32 s49, s48, 10\ns_lshl_b32 s56, s51, 8\ns_add_u32 s49, s49, s56\ns_add_u32 s49, s49, {STAT2}")
        k("v_and_b32 v57, 31, v1\nv_lshrrev_b32 v58, 5, v1\nv_lshlrev_b32 v58, 11, v58\nv_lshl_add_u32 v49, v57, 3, v58\nv_add_u32 v49, s49, v49")
        k(f"s_lshl_b32 s49, s51, 9\ns_add_u32 s49, s49, {STAT3}\nv_lshl_add_u32 v50, v57, 4, s49")
        k(f"v_lshlrev_b32 v61, 3, v1\nv_add_u32 v61, {FLAGS}, v61")

    def ld_lane_basics(self):
        k = self.k
        k(f"s_and_b32 s51, {sW}, 3")
        k("v_lshrrev_b32 v4, 3, v1\nv_and_b32 v5, 7, v1")
        k("s_and_b32 s48, s51, 1\ns_lshl_b32 s48, s48, 2")
        k(f"v_and_b32 v57, 1, v3\nv_lshlrev_b32 v57, 1, v57\nv_or_b32 v57, s48, v57\nv_xor_b32 v57, v57, v5")
        k(f"s_lshl_b32 s49, {sJ}, 7\nv_lshl_add_u32 v13, v57, 4, s49")

    def loader_p1(self):
        k = self.k
        vm = VM(k)
        self.ld_lane_basics()
        k(f"s_lshl_b32 s49, s51, 3\ns_add_u32 s56, {sROW}, s49\ns_sub_u32 s56, s56, 16")
        k("v_add_u32 v57, s56, v4\ns_movk_i32 s57, 1280\nv_mul_lo_u32 v57, v57, s57")
        k("v_or_b32 v58, s48, v3\nv_xor_b32 v58, v58, v5\nv_lshl_add_u32 v6, v58, 4, v57")
        k(f"v_add_u32 v7, {32*1280}, v6\nv_add_u32 v8, {64*1280}, v6")
        k(f"s_add_u32 s56, {sROW}, 80\nv_add_u32 v57, s56, v4\nv_mul_lo_u32 v57, v57, s57")
        k("v_xor_b32 v58, v3, v5\nv_lshl_add_u32 v9, v58, 4, v57")
        k("v_add_u32 v57, s49, v4\ns_movk_i32 s57, 3840\nv_mad_u32_u24 v10, v57, s57, v13")
        k("s_lshl_b32 s49, s51, 4\ns_bfm_b64 s[52:53], 16, s49")
        if self.o.get("rot", 1):
            k(f"s_mul_i32 s50, {sG}, 10\ns_lshr_b32 s50, s50, 3")
        else:
            k("s_mov_b32 s50, 0")
        for i in range(4):
            self.ld_p1_stage(vm, i)
        self.ts(1)
        k("s_mov_b32 s80, s50")
        self.attn_setup()
        k(f"s_and_b32 s51, {sW}, 3")
        self.ld_common_setup()
        for i in range(3):
            k(f"s_mul_i32 s48, s51, 22\ns_add_u32 s48, s48, {8*i}\nv_add_u32 v57, s48, v4")
            k(f"v_lshlrev_b32 v58, 1, v57\ns_lshl_b32 s49, {sNP}, 1\ns_sub_u32 s49, s49, 1\nv_subrev_u32 v59, s49, v58")
            k(f"v_cmp_gt_u32 vcc, {sNP}, v57\nv_cndmask_b32 v58, v59, v58, vcc\nv_add_u32 v58, {sROW}, v58")
            k(f"v_and_b32 v59, 7, v57\nv_xor_b32 v59, v59, v5\ns_lshl_b32 s49, {sJ}, 7\nv_lshl_add_u32 v59, v59, 4, s49")
            k(f"s_movk_i32 s49, 1280\nv_mad_u32_u24 v{51+i}, v58, s49, v59")
        k("s_mov_b32 s50, s80")
        k(f"v_lshlrev_b32 v19, 4, v1\nv_add_u32 v18, {sLW}, v19\nv_mov_b32 v44, 0x3f803f80")
        for q in range(8):
            k(f"v_mov_b32 v{36+q}, 0")
        for i in range(10):
            vm.wait(("p1", i))
            k("s_barrier")
            self.ts(2 + i)
            if 1 <= i <= 6:
                self.ld_p1_stage(vm, i + 3)
            if i == 7:
                for p in (0, 1, 2, 6):
                    self.ld_wo_piece(vm, p)
            if i == 8:
                for p in (3, 4, 5, 7, 8):
                    self.ld_wo_piece(vm, p)
            self.ld_stats(i)
        for ctl in ("quad_perm:[1,0,3,2]", "quad_perm:[2,3,0,1]", "row_half_mirror"):
            for q in range(8):
                k(f"v_add_f32_dpp v{36+q}, v{36+q}, v{36+q} {ctl} row_mask:0xf bank_mask:0xf")
        k(f"s_mov_b32 s48, {f2u(1.0/640):#x}\ns_mov_b32 s49, {f2u(1e-5):#x}")
        for q in range(4):
            k(f"v_mul_f32 v{21+2*q}, s48, v{36+q}\nv_mul_f32 v{40+q}, s48, v{40+q}")
        for q in range(4):
            k(f"v_fma_f32 v{40+q}, -v{21+2*q}, v{21+2*q}, v{40+q}")
        for q in range(4):
            k(f"v_max_f32 v{40+q}, 0, v{40+q}")
        for q in range(4):
            k(f"v_add_f32 v{40+q}, s49, v{40+q}")
        for q in range(4):
            k(f"v_rsq_f32 v{20+2*q}, v{40+q}")
        for q in range(4):
            k(f"v_sub_f32 v{21+2*q}, 0, v{21+2*q}")
        k(f"s_lshl_b32 s48, s51, 6\nv_lshlrev_b32 v57, 3, v4\nv_add_u32 v57, {STAT1}, v57\nv_add_u32 v58, s48, v57")
        k("s_mov_b32 s48, 0x01010101\ns_mov_b32 s49, s48\ns_mov_b64 exec, s[48:49]")
        for q in range(3):
            k(f"ds_write_b64 v58, v[{20+2*q}:{21+2*q}] offset:{q*256}")
        k("s_and_b64 exec, s[48:49], s[52:53]")
        k("ds_write_b64 v57, v[26:27] offset:768")
        k("s_mov_b64 exec, -1")
        self.ld_wo_piece(vm, 9)
        k("s_waitcnt lgkmcnt(0)\ns_barrier")
        self.ts(12)
        for i in range(3):
            k(f"s_add_u32 m0, s75, {XRES + i*1024}")
            if i == 2:
                k("s_mov_b64 exec, s[76:77]")
            vm.issue("xres", f"buffer_load_dwordx4 v{51+i}, {SX}, 0 offen lds")
        k("s_mov_b64 exec, -1")
        self.read_pure()
        k("s_branch L_attn")

    def ld_act88(self, vm, tag, s, slot):
        k = self.k
        k(f"s_mov_b32 s56, {OBUF + s*32768}")
        for i in range(3):
            k(f"s_add_u32 m0, s75, {A2S(slot) + i*1024}")
            if i == 2:
                k("s_mov_b64 exec, s[76:77]")
            vm.issue(tag, f"buffer_load_dwordx4 v{15+i}, {SWS}, s56 offen sc1 lds")
        k("s_mov_b64 exec, -1")

    def ld_w3_stage(self, vm, i):
        k = self.k
        k(f"s_mov_b32 s56, {i*64*3072}")
        for mat, srd in enumerate((SW1, SW3)):
            for q in range(3):
                k(f"s_add_u32 m0, s78, {W3S[i % 4] + mat*12288 + q*1024}")
                vm.issue(("w3", i), f"buffer_load_dwordx4 v{45+q}, {srd}, s56 offen lds")

    def ld_a3_stage(self, vm, i):
        k = self.k
        for ksub in range(2):
            k(f"s_mov_b32 s56, {(2*i + ksub)*16384}")
            k(f"s_add_u32 m0, s79, {A3S(i % 3) + ksub*8192}")
            for q in range(2):
                vm.issue(("a3", i), f"buffer_load_dwordx4 v48, {SWS}, s56 offen offset:{q*1024} sc1 lds")

    def ld_w4_piece(self, vm, p):
        k = self.k
        for hf in range(2):
            k(f"s_add_u32 s56, s73, {(64*p + 32*hf)*1280}")
            k(f"s_add_u32 m0, {sLW}, {W4P[p % 13] + hf*4096}")
            vm.issue(("w4", p), f"buffer_load_dwordx4 v14, {SW2}, s56 offen lds")

    def ld_poll(self, kind, both, maskcode):
        k = self.k
        skip = k.lab("L_np")
        k(f"s_cmp_lg_u32 {sW}, 4\ns_cbranch_scc1 {skip}")
        k(maskcode)
        self.poll(kind, both)
        k(f"{skip}:")
        k("s_barrier")

    def loader_rest(self):
        k = self.k
        vm = VM(k)
        k("L_ld_p2:")
        self.ts(20)
        self.ld_poll(1, True, f"s_mul_i32 s48, {sT}, 10\ns_bfm_b64 exec, 10, s48")
        self.ts(21)
        for i in range(4):
            self.ld_act88(vm, ("a2", i), i, i)
        for i in range(10):
            vm.wait(("a2", i))
            k("s_barrier")
            if i in (0, 9):
                self.ts(22 + (i == 9))
            if 1 <= i <= 6:
                self.ld_act88(vm, ("a2", i + 3), i + 3, (i + 3) % 4)
            if i == 7:
                self.ld_w3_stage(vm, 0)
            if i == 8 and self.o.get("w3pre", 2) >= 2:
                self.ld_w3_stage(vm, 1)
        k("s_barrier")
        k("L_ld_p3:")
        npre = self.o.get("w3pre", 2)
        for i in range(2, npre):
            self.ld_w3_stage(vm, i)
        self.ts(24)
        self.ld_poll(2, False, f"s_lshr_b32 s48, {sR}, 4\ns_mul_i32 s48, s48, 10\ns_bfm_b64 exec, 20, s48")
        self.ts(25)
        for i in range(4):
            if i < 3:
                self.ld_a3_stage(vm, i)
            if i >= npre:
                self.ld_w3_stage(vm, i)
        for i in range(10):
            vm.wait(("a3", i), ("w3", i))
            if i == 5:
                k("s_waitcnt lgkmcnt(0)")
            k("s_barrier")
            self.ts(26 + i)
            if i >= 1 and i + 2 <= 9:
                self.ld_a3_stage(vm, i + 2)
            if i >= 1 and i + 3 <= 9:
                self.ld_w3_stage(vm, i + 3)
            if i == 0:
                for q in range(10):
                    k(f"s_mov_b32 s56, {q*4096}")
                    vm.issue("st", f"buffer_load_dwordx2 v[{20+2*q}:{21+2*q}], v49, {SWS}, s56 offen sc1")
            if i == 4:
                vm.wait("st")
                for q in range(1, 10):
                    k(f"v_pk_add_f32 v[20:21], v[20:21], v[{20+2*q}:{21+2*q}]")
                k("v_mov_b32 v22, v20\nv_mov_b32 v23, v21")
                k("v_permlane32_swap_b32 v22, v20\nv_permlane32_swap_b32 v23, v21")
                k(f"s_mov_b32 s48, {f2u(1.0/640):#x}\ns_mov_b32 s49, {f2u(1e-5):#x}")
                k("v_add_f32 v20, v20, v22\nv_add_f32 v21, v21, v23")
                k("v_mul_f32 v20, s48, v20\nv_mul_f32 v21, s48, v21")
                k("v_fma_f32 v21, -v20, v20, v21\nv_max_f32 v21, 0, v21\nv_add_f32 v26, s49, v21")
                k(f"v_rsq_f32 v25, v26\nv_sub_f32 v24, 0, v20\nv_mov_b32 v27, 0\nv_mul_f32 v25, {f2u(-LOG2E):#x}, v25")
                k("s_mov_b64 exec, 0xffffffff\nds_write_b128 v50, v[24:27]\ns_mov_b64 exec, -1")
            w4pre = self.o.get("w4pre", 9)
            if i >= 7:
                for p in range(3 * (i - 7), 3 * (i - 6)):
                    if p < w4pre:
                        self.ld_w4_piece(vm, p)
        k("s_barrier")
        k(f"s_cmp_ge_u32 {sR}, 30\ns_cbranch_scc1 L_fin")
        for p in range(9, w4pre):
            self.ld_w4_piece(vm, p)
        self.ts(36)
        self.ld_poll(3, False, f"s_cmp_eq_u32 {sT}, 1\ns_cselect_b32 s48, 32, 16\ns_cmp_eq_u32 {sT}, 2\ns_cselect_b32 s49, 16, 0\ns_bfm_b64 exec, s48, s49")
        self.ts(37)
        nxt = w4pre
        for i in range(4):
            self.ld_act88(vm, ("a4", i), i, i)
            while nxt <= i:
                self.ld_w4_piece(vm, nxt)
                nxt += 1
        lead = self.o.get("w4lead", 4)
        for i in range(24):
            vm.wait(("a4", i), ("w4", i))
            k("s_barrier")
            if i in (0, 8, 16, 23):
                self.ts(38 + (i + 1) // 8)
            if i >= 1 and i + 3 <= 23:
                self.ld_act88(vm, ("a4", i + 3), i + 3, (i + 3) % 4)
            target = min(24, max(i + lead, w4pre + ((24 - w4pre) * (i + 1) + 19) // 20))
            while nxt < target and nxt - 12 <= i:
                self.ld_w4_piece(vm, nxt)
                nxt += 1
        assert nxt == 24
        k("s_branch L_fin")

    def loader_helper(self):
        k = self.k
        vm = VM(k)
        k("L_ld_helper:")
        self.ld_lane_basics()
        self.ld_common_setup()
        for i in range(min(2, self.o.get("w3pre", 2))):
            self.ld_w3_stage(vm, i)
        k("s_barrier")
        self.read_pure()
        k("s_branch L_ld_p3")

    def comp_p1(self):
        k = self.k
        k("L_comp:")
        k("s_mov_b32 s3, 0")
        noh, nores = k.lab("L_noh"), k.lab("L_nores")
        k(f"s_cmp_lg_u32 {sW}, 0\ns_cbranch_scc1 {noh}")
        k(f"s_cmp_lg_u32 {sR}, 31\ns_cbranch_scc1 {nores}")
        k(f"v_mov_b32 v4, 0\nv_mov_b32 v5, 0\nv_mov_b32 v6, 0\nv_mov_b32 v7, 0\nv_lshlrev_b32 v8, 4, v1\ns_mov_b32 s48, {FLAGS}")
        k(f"buffer_store_dwordx4 v[4:7], v8, {SWS}, s48 offen sc1\ns_waitcnt vmcnt(0)")
        k(f"{nores}:")
        k(f"s_mul_i32 s50, {sXCC}, {sXCC}\ns_lshl_b32 s50, s50, 16\ns_lshl_b32 s51, {sXCC}, 8\ns_add_u32 s50, s50, s51\ns_add_u32 s50, s50, 1")
        k(f"v_mov_b32 v9, s50\ns_lshl_b32 s48, {sG}, 5\ns_mov_b64 exec, 1")
        k(f"buffer_atomic_add v9, off, {SDBG}, s48\ns_mov_b64 exec, -1")
        k(f"{noh}:")
        k(f"s_cmp_ge_u32 {sR}, 30\ns_cbranch_scc1 L_comp_helper")
        k(f"s_mul_i32 s48, {sW}, 14336\ns_add_u32 s48, s48, 13312\nv_lshl_add_u32 v8, v1, 4, s48")
        self.attn_setup()
        k("ds_write_b128 v8, v[236:239]")
        k("v_lshrrev_b32 v57, 1, v2\nv_xor_b32 v57, v57, v3\nv_lshlrev_b32 v57, 4, v57\nv_lshl_add_u32 v4, v2, 7, v57\nv_xor_b32 v5, 64, v4")
        self.wfrag_addr(lambda: k(f"v_xor_b32 v57, {sW}, v57"))
        k(f"v_add_u32 v6, {W1S(0)}, v57\nv_add_u32 v7, {W1S(2)}, v57")
        k(f"v_lshlrev_b32 v8, 3, v2\nv_add_u32 v8, {STAT1}, v8")
        k(f"v_and_b32 v57, 1, v2\ns_movk_i32 s48, {PB}\nv_mul_u32_u24 v57, s48, v57\nv_lshrrev_b32 v58, 1, v2\ns_movk_i32 s48, {RS}")
        k(f"v_mad_u32_u24 v57, v58, s48, v57\nv_lshl_add_u32 v57, v3, 3, v57\ns_lshl_b32 s48, {sW}, 5\ns_add_u32 s48, s48, {IMG+16}\nv_add_u32 v9, s48, v57")
        k(f"v_and_b32 v57, 1, v3\nv_lshlrev_b32 v57, 3, v57\nv_lshl_add_u32 v57, v2, 4, v57")
        k(f"v_lshrrev_b32 v58, 1, v3\ns_lshr_b32 s48, {sW}, 1\nv_cmp_eq_u32 vcc, s48, v58\nv_mov_b32 v58, {OOB:#x}\nv_cndmask_b32 v10, v58, v57, vcc")
        k(f"s_mul_i32 s73, {sR}, 5376\ns_add_u32 s73, s73, {EXPB}\ns_add_u32 s74, s73, 1792\ns_add_u32 s75, s73, 3584")
        k(f"s_cmp_lt_u32 {sJM}, 2\ns_cselect_b32 s48, 3, 0\ns_cmp_eq_u32 {sJM}, 2\ns_cselect_b32 s48, 9, s48\ns_cmp_eq_u32 s48, {sW}\ns_cselect_b32 s76, 1, 0")
        acc = lambda mat, m: (64 + 4 * (m - 1), 88 + 4 * m, 116 + 4 * m)[mat]
        tiles = [(mat, m) for m in range(7) for mat in range(3) if not (mat == 0 and m == 0)]

        def reads(n):
            i, s = n // 2, n % 2
            sl, st = i % 4, 144 + 40 * (n % 2)
            r = []
            wb, wo_ = (6, W1S(sl) - W1S(0)) if sl < 2 else (7, W1S(sl) - W1S(2))
            xr = [f"ds_read_b128 {vr(st + 4*m, 4)}, v{4+s} offset:{XS(sl) + m*2048}" for m in range(7)]
            wr = [f"ds_read_b64_tr_b16 {vr(st + 28 + 4*mat + 2*h, 2)}, v{wb} offset:{wo_ + mat*8192 + s*4096 + h*512}"
                  for mat in range(3) for h in range(2)]
            return wr + xr

        def mfmas(n):
            st = 144 + 40 * (n % 2)
            return [f"v_mfma_f32_16x16x32_bf16 {vr(acc(mat, m), 4)}, {vr(st + 28 + 4*mat, 4)}, {vr(st + 4*m, 4)}, "
                    + ("0" if n == 0 else vr(acc(mat, m), 4)) for (mat, m) in tiles]

        k("s_waitcnt lgkmcnt(0)")
        self.ts(1)
        k("s_barrier")
        self.ts(2)
        for r in reads(0):
            k(r)
        for n in range(20):
            if n == 10:
                self.hello_issue()
            if n == 16:
                self.hello_check()
            k("s_waitcnt lgkmcnt(0)")
            late = (n == 17 and self.o.get("late_last", 1))
            if late:
                for m in mfmas(n):
                    k(m)
                k("s_barrier")
                for r in reads(n + 1):
                    k(r)
                continue
            if n % 2 == 1:
                k("s_barrier")
            side = reads(n + 1) if n < 19 else [f"ds_read_b64 {vr(144 + 2*m, 2)}, v8 offset:{m*128}" for m in range(7)]
            interleave(k, mfmas(n), side)
        self.ts(12)
        k("s_waitcnt lgkmcnt(0)")
        k(f"s_mov_b32 s48, {f2u(QSCALE):#x}")
        for m in range(1, 7):
            k(f"v_mul_f32 v{172 + m - 1}, s48, v{144 + 2*m}")
        for mat in range(3):
            for r in range(4):
                k(f"v_mov_b32_dpp v{160 + 4*mat + r}, v{acc(mat, 6) + r} row_newbcast:15 row_mask:0xf bank_mask:0xf")

        def conv(mat, m):
            a, st, cs = acc(mat, m), 144 + 2 * m, 160 + 4 * mat
            o = [f"v_pk_fma_f32 {vr(a + 2*q, 2)}, {vr(cs + 2*q, 2)}, {vr(st, 2)}, {vr(a + 2*q, 2)} op_sel:[0,1,0] op_sel_hi:[1,1,1]" for q in range(2)]
            if mat == 0:
                qs = 172 + m - 1
                sel = "op_sel_hi:[1,0]" if qs % 2 == 0 else "op_sel:[0,1] op_sel_hi:[1,1]"
                o += [f"v_pk_mul_f32 {vr(a + 2*q, 2)}, {vr(a + 2*q, 2)}, {vr(qs & ~1, 2)} {sel}" for q in range(2)]
            else:
                o += [f"v_pk_mul_f32 {vr(a + 2*q, 2)}, {vr(a + 2*q, 2)}, {vr(st, 2)} op_sel_hi:[1,0]" for q in range(2)]
            o += [f"v_cvt_pk_bf16_f32 v{a}, v{a}, v{a+1}", f"v_cvt_pk_bf16_f32 v{a+1}, v{a+2}, v{a+3}"]
            return o

        def wr_img(mat, m):
            return f"ds_write_b64 v9, {vr(acc(mat, m), 2)} offset:{m*8*RS + mat*160}"

        def body(export):
            for p in range(0, 20, 2):
                c0, c1 = conv(*tiles[p]), conv(*tiles[p + 1])
                for x, y in zip(c0, c1):
                    k(x)
                    k(y)
                for (mat, m) in tiles[p:p + 2]:
                    if export:
                        k(f"buffer_store_dwordx2 {vr(acc(mat, m), 2)}, v10, {SWS}, s{73+mat} offen offset:{m*256}")
                    elif m < 6:
                        k(wr_img(mat, m))
            if export:
                for (mat, m) in tiles:
                    if m < 6:
                        k(wr_img(mat, m))
            k("s_mov_b32 s48, 0x00ff00ff\ns_mov_b32 s49, s48\ns_mov_b64 exec, s[48:49]")
            for mat in range(3):
                k(wr_img(mat, 6))
            k("s_mov_b64 exec, -1")

        lexp = k.lab("L_exp")
        k(f"s_cmp_eq_u32 s76, 1\ns_cbranch_scc1 {lexp}")
        body(False)
        k("s_branch L_attn")
        k(f"{lexp}:")
        body(True)
        self.signal(0, byte_is_wave=False)

    def wfrag_addr(self, xorj):
        k = self.k
        k("v_lshrrev_b32 v57, 3, v1\nv_and_b32 v57, 3, v57")
        xorj()
        k("v_lshlrev_b32 v57, 5, v57\nv_and_b32 v58, 3, v1\nv_lshl_add_u32 v57, v58, 3, v57")
        k("v_lshrrev_b32 v58, 2, v2\nv_lshl_add_u32 v58, v3, 3, v58\nv_lshl_add_u32 v57, v58, 7, v57")

    def attention(self):
        k = self.k
        k("L_attn:")
        k("s_waitcnt lgkmcnt(0)\ns_barrier")
        self.ts(13)
        noimp, sig = k.lab("L_noimp"), k.lab("L_asig")
        k(f"s_cmp_eq_u32 s68, 0\ns_cbranch_scc1 {sig}")
        k(f"s_cmp_eq_u32 s69, 0\ns_cbranch_scc1 {noimp}")
        k(f"v_mov_b32 v57, v61\ns_lshl_b32 s48, s70, 3\ns_add_u32 s48, s48, {FLAGS}\nv_mov_b32 v61, s48\ns_mov_b64 exec, 1")
        self.poll(0, False, want=1)
        k("v_mov_b32 v61, v57\ns_bfm_b64 exec, 52, 0")
        for mat in range(3):
            k(f"buffer_load_dwordx4 {vr(64 + 4*mat, 4)}, v250, {SWS}, 0 offen offset:{mat*1792} sc1")
        for mat in range(3):
            k(f"s_waitcnt vmcnt({2-mat})")
            k(f"ds_write2_b64 v251, {vr(64 + 4*mat, 2)}, {vr(66 + 4*mat, 2)} offset0:{mat*20} offset1:{mat*20+1}")
        k("s_mov_b64 exec, -1")
        k(f"{noimp}:")
        self.ts(14)
        Q = lambda b: 64 + 4 * b
        KK = lambda c: 76 + 4 * c
        V1, V2 = 92, 100
        Sx = lambda b: 120 + 8 * b
        P = lambda b: 144 + 4 * b
        O1 = lambda b: 156 + 4 * b
        O2 = lambda b: 168 + 4 * b
        L = lambda b: 180 + 4 * b
        M = lambda b: 196 + 2 * b
        BL = 16 * RS
        rd = []
        for c in range(4):
            a1, a2 = (240, 241) if c < 3 else (242, 243)
            rd.append(f"ds_read_b64 {vr(KK(c), 2)}, v{a1} offset:{c*BL + 160}")
            rd.append(f"ds_read_b64 {vr(KK(c)+2, 2)}, v{a2} offset:{c*BL + 160}")
            if c < 3:
                rd.append(f"ds_read_b64 {vr(Q(c), 2)}, v240 offset:{c*BL + 8*RS}")
                rd.append(f"ds_read_b64 {vr(Q(c)+2, 2)}, v241 offset:{c*BL + 8*RS}")
        for r in rd:
            k(r)
        k("v_cmp_eq_u32 vcc, 0, v3")
        k("s_waitcnt lgkmcnt(0)")
        for c in range(4):
            a = 244 if c < 3 else 245
            k(f"ds_read_b64_tr_b16 {vr(V1 + 2*c, 2)}, v{a} offset:{c*BL + 320}")
            k(f"ds_read_b64_tr_b16 {vr(V2 + 2*c, 2)}, v{a} offset:{c*BL + 352}")
        for b in range(3):
            k(f"v_cndmask_b32 v{Q(b)+2}, 0, v{Q(b)+2}, vcc\nv_cndmask_b32 v{Q(b)+3}, 0, v{Q(b)+3}, vcc")
        for b in range(3):
            k(f"v_mfma_f32_16x16x32_bf16 {vr(Sx(b), 4)}, {vr(KK(b), 4)}, {vr(Q(b), 4)}, {vr(232 if b == 0 else 224, 4)}")
            k(f"v_mfma_f32_16x16x32_bf16 {vr(Sx(b)+4, 4)}, {vr(KK(b+1), 4)}, {vr(Q(b), 4)}, v[228:231]")
        B3 = range(3)
        for b in B3:
            k(f"v_max3_f32 v{M(b)}, v{Sx(b)}, v{Sx(b)+1}, v{Sx(b)+2}")
        for b in B3:
            k(f"v_max3_f32 v{M(b)+1}, v{Sx(b)+3}, v{Sx(b)+4}, v{Sx(b)+5}")
        for b in B3:
            k(f"v_max3_f32 v{M(b)}, v{M(b)}, v{Sx(b)+6}, v{Sx(b)+7}")
        for b in B3:
            k(f"v_max_f32 v{M(b)}, v{M(b)}, v{M(b)+1}")
        for sw in ("v_permlane32_swap_b32", "v_permlane16_swap_b32"):
            for b in B3:
                k(f"v_mov_b32 v{M(b)+1}, v{M(b)}")
            for b in B3:
                k(f"{sw} v{M(b)+1}, v{M(b)}")
            for b in B3:
                k(f"v_max_f32 v{M(b)}, v{M(b)}, v{M(b)+1}")
        for b in B3:
            for q in range(4):
                k(f"v_pk_add_f32 {vr(Sx(b)+2*q, 2)}, {vr(Sx(b)+2*q, 2)}, {vr(M(b), 2)} op_sel_hi:[1,0] neg_lo:[0,1] neg_hi:[0,1]")
            for q in range(8):
                k(f"v_exp_f32 v{Sx(b)+q}, v{Sx(b)+q}")
            for q in range(4):
                k(f"v_cvt_pk_bf16_f32 v{P(b)+q}, v{Sx(b)+2*q}, v{Sx(b)+2*q+1}")
            if b == 0:
                k("s_waitcnt lgkmcnt(0)")
            k(f"v_mfma_f32_16x16x32_bf16 {vr(L(b), 4)}, v[236:239], {vr(P(b), 4)}, 0")
            k(f"v_mfma_f32_16x16x32_bf16 {vr(O1(b), 4)}, {vr(V1 + 2*b, 4)}, {vr(P(b), 4)}, 0")
            k(f"v_mfma_f32_16x16x32_bf16 {vr(O2(b), 4)}, {vr(V2 + 2*b, 4)}, {vr(P(b), 4)}, 0")
        for b in B3:
            k(f"v_rcp_f32 v{L(b)}, v{L(b)}")
            for o in (O1(b), O2(b)):
                for q in range(2):
                    k(f"v_pk_mul_f32 {vr(o+2*q, 2)}, {vr(o+2*q, 2)}, {vr(L(b), 2)} op_sel_hi:[1,0]")
            for o in (O1(b), O2(b)):
                k(f"v_cvt_pk_bf16_f32 v{o}, v{o}, v{o+1}\nv_cvt_pk_bf16_f32 v{o+1}, v{o+2}, v{o+3}")
            k(f"buffer_store_dwordx2 {vr(O1(b), 2)}, v{246 if b < 2 else 247}, {SWS}, 0 offen offset:{b*256}")
            k(f"buffer_store_dwordx2 {vr(O2(b), 2)}, v{248 if b < 2 else 249}, {SWS}, 0 offen offset:{b*256}")
        k(f"{sig}:")
        self.ts(15)
        self.signal(1)
        self.ts(16)
        k("s_cmp_eq_u32 s3, 1\ns_cbranch_scc1 L_ld_p2")

    WIN = (0, 98304)

    def gemm88(self, nst, wslot, tsbase):
        k = self.k
        acc = lambda i, a: 64 + 8 * i + 4 * a

        def reads(s):
            st = 88 + 40 * (s % 2)
            w = wslot(s)
            win = 1 if w >= self.WIN[1] else 0
            r = []
            for ks in range(2):
                for a in range(2):
                    for h in range(2):
                        r.append(f"ds_read_b64_tr_b16 {vr(st + 20*ks + 12 + 4*a + 2*h, 2)}, v{40 + 2*win + a} offset:{w - self.WIN[win] + ks*4096 + h*512}")
                for i in range(3):
                    r.append(f"ds_read_b128 {vr(st + 20*ks + 4*i, 4)}, v44 offset:{A2S(s % 4) - A2S(0) + ks*1408 + i*256}")
            return r

        def mfmas(s):
            st = 88 + 40 * (s % 2)
            return [f"v_mfma_f32_16x16x32_bf16 {vr(acc(i, a), 4)}, {vr(st + 20*ks + 12 + 4*a, 4)}, {vr(st + 20*ks + 4*i, 4)}, {vr(acc(i, a), 4)}"
                    for ks in range(2) for i in range(3) for a in range(2)]

        for s in range(nst):
            if s == nst - 1 and self.o.get("late_last", 1):
                for m in mfmas(s - 1):
                    k(m)
                k("s_barrier")
                for r in reads(s):
                    k(r)
            else:
                k("s_barrier")
                if s == 0:
                    self.ts(tsbase)
                    for r in reads(0):
                        k(r)
                else:
                    rr = reads(s)
                    k(rr[0])
                    k(rr[1])
                    interleave(k, mfmas(s - 1), rr[2:])
            k("s_waitcnt lgkmcnt(0)")
        return mfmas(nst - 1)

    def unpack_acc(self, src):
        k = self.k
        for i in range(3):
            for a in range(2):
                for q in range(2):
                    d, s = 64 + 8 * i + 4 * a + 2 * q, src + 4 * i + 2 * a + q
                    k(f"v_lshlrev_b32 v{d}, 16, v{s}\nv_and_b32 v{d+1}, 0xffff0000, v{s}")

    def comp_p2(self):
        k = self.k
        k(f"s_and_b32 s64, {sW}, 1\ns_lshr_b32 s65, {sW}, 1\ns_lshl_b32 s48, s64, 1")
        self.wfrag_addr(lambda: k("v_xor_b32 v57, s48, v57"))
        k(f"v_mov_b32 v40, v57\nv_xor_b32 v41, 32, v57\nv_add_u32 v42, {self.WIN[1]}, v40\nv_add_u32 v43, {self.WIN[1]}, v41")
        k("s_mul_i32 s66, s65, 48\nv_add_u32 v45, s66, v2")
        k(f"s_movk_i32 s48, 176\nv_mad_u32_u24 v57, v3, s48, v45\nv_lshlrev_b32 v57, 4, v57\nv_add_u32 v44, {A2S(0)}, v57")
        k("s_lshl_b32 s48, s64, 2\nv_lshrrev_b32 v57, 1, v3\nv_or_b32 v57, s48, v57\nv_and_b32 v58, 7, v2\nv_xor_b32 v57, v57, v58")
        k(f"v_lshlrev_b32 v57, 4, v57\nv_and_b32 v58, 1, v3\nv_lshl_add_u32 v57, v58, 3, v57\nv_lshl_add_u32 v46, v45, 7, v57\nv_xor_b32 v47, 32, v46")
        k(f"s_lshl_b32 s48, {sJ}, 1\ns_add_u32 s48, s48, s64\ns_mul_i32 s50, {sT}, 88")
        k(f"s_lshl_b32 s49, s48, 14\ns_lshl_b32 s51, s50, 4\ns_add_u32 s49, s49, s51\ns_add_u32 s49, s49, {HBUF}")
        k("v_lshlrev_b32 v57, 4, v45\nv_lshl_add_u32 v57, v3, 12, v57\nv_add_u32 v48, s49, v57")
        k(f"s_lshl_b32 s67, {sNP}, 1\ns_sub_u32 s51, s67, 32\nv_cmp_gt_u32 vcc, s51, v45\nv_mov_b32 v58, {OOB:#x}\nv_cndmask_b32 v49, v58, v48, vcc")
        k(f"s_lshl_b32 s49, s48, 8\ns_add_u32 s49, s49, s50\ns_lshl_b32 s49, s49, 3\ns_add_u32 s49, s49, {STAT2}")
        k("v_lshl_add_u32 v57, v45, 3, s49\nv_lshrrev_b32 v59, 2, v2\nv_cmp_eq_u32 s[48:49], v59, v3\nv_cndmask_b32 v50, v58, v57, s[48:49]\nv_cndmask_b32 v51, v58, v50, vcc")
        for q, mk in enumerate((0x22222222, 0x44444444, 0x88888888)):
            k(f"s_mov_b32 s{56+2*q}, {mk:#x}\ns_mov_b32 s{57+2*q}, {mk:#x}")
        k("s_barrier")
        self.ts(21)
        for i in range(3):
            for a in range(2):
                k(f"ds_read_b64 {vr(168 + 4*i + 2*a, 2)}, v{46+a} offset:{XRES + i*2048}")
        k("s_waitcnt lgkmcnt(0)")
        self.unpack_acc(168)
        last = self.gemm88(10, lambda s: WOP[s], 22)
        k("s_barrier")
        for m in last:
            k(m)
        self.ts(23)
        for i in range(3):
            for a in range(2):
                s = 64 + 8 * i + 4 * a
                k(f"v_cvt_pk_bf16_f32 v{240 + 4*i + 2*a}, v{s}, v{s+1}\nv_cvt_pk_bf16_f32 v{241 + 4*i + 2*a}, v{s+2}, v{s+3}")
            k(f"buffer_store_dwordx4 {vr(240 + 4*i, 4)}, v{48 if i < 2 else 49}, {SWS}, 0 offen offset:{i*256}")
            k(f"v_mfma_f32_16x16x32_bf16 {vr(88 + 8*i, 4)}, v[236:239], {vr(240 + 4*i, 4)}, 0")
            k(f"v_mfma_f32_16x16x32_bf16 {vr(92 + 8*i, 4)}, {vr(240 + 4*i, 4)}, {vr(240 + 4*i, 4)}, 0")
        for i in range(3):
            g = 92 + 8 * i
            k(f"v_cndmask_b32 v{g}, v{g}, v{g+1}, s[56:57]\nv_cndmask_b32 v{g}, v{g}, v{g+2}, s[58:59]\nv_cndmask_b32 v{89 + 8*i}, v{g}, v{g+3}, s[60:61]")
            k(f"buffer_store_dwordx2 {vr(88 + 8*i, 2)}, v{50 if i < 2 else 51}, {SWS}, 0 offen offset:{i*128}")
        self.signal(2)
        self.ts(24)

    def comp_p3(self):
        k = self.k
        k("L_comp_p3:")
        k(f"s_and_b32 s64, {sW}, 1\ns_lshr_b32 s65, {sW}, 1")
        k("v_lshrrev_b32 v57, 2, v1\ns_movk_i32 s48, 192\nv_mul_u32_u24 v57, s48, v57\nv_and_b32 v58, 3, v1\nv_lshl_add_u32 v57, v58, 3, v57\nv_and_b32 v58, 1, v3")
        for a in range(3):
            k(f"s_cmp_eq_u32 s64, 0\ns_cselect_b32 s48, {a}, {(4, 5, 3)[a]}\nv_xor_b32 v59, s48, v58\nv_lshl_add_u32 v{4+a}, v59, 5, v57\nv_add_u32 v{7+a}, 106496, v{4+a}")
        k(f"s_lshl_b32 s48, s65, 6\nv_add_u32 v57, s48, v2\nv_lshl_add_u32 v58, v3, 7, v57\nv_lshlrev_b32 v58, 4, v58\nv_add_u32 v10, {A3S(0)}, v58")
        k(f"v_lshlrev_b32 v11, 4, v57\nv_add_u32 v11, {STAT3}, v11")
        k(f"s_and_b32 s48, {sR}, 15\ns_mul_i32 s48, s48, 3\ns_lshr_b32 s49, {sR}, 4\ns_lshl_b32 s49, s49, 11")
        k("v_lshlrev_b32 v57, 4, v57\nv_lshl_add_u32 v57, v3, 12, v57\nv_add_u32 v57, s49, v57")
        k("s_lshl_b32 s49, s64, 1\ns_add_u32 s49, s49, s48\ns_lshl_b32 s49, s49, 14\nv_add_u32 v52, s49, v57")
        k("s_add_u32 s49, s48, 1\ns_lshl_b32 s49, s49, 14\ns_lshl_b32 s50, s64, 3\ns_add_u32 s49, s49, s50\nv_add_u32 v53, s49, v57")
        for r in range(4):
            k(f"v_mov_b32 v{36+r}, 0x3f803f80")
        acc = lambda i, mat, a: 64 + 24 * i + 12 * mat + 4 * a
        cs = lambda mat, a: 12 + 12 * mat + 4 * a

        def reads(n):
            i, s = n // 2, n % 2
            st = 160 + 40 * (n % 2)
            w = W3S[i % 4]
            wb, wo_ = (7, w - 106496) if w >= 106496 else (4, w)
            wr = [f"ds_read_b64_tr_b16 {vr(st + 16 + 12*mat + 4*a + 2*h, 2)}, v{wb+a} offset:{wo_ + mat*12288 + s*6144 + h*3072}"
                  for mat in range(2) for a in range(3) for h in range(2)]
            ar = [f"ds_read_b128 {vr(st + 4*m, 4)}, v10 offset:{A3S(i % 3) - A3S(0) + s*8192 + m*256}" for m in range(4)]
            return ar[:1] + wr[:6] + ar[1:] + wr[6:]

        def mfmas(n):
            st = 160 + 40 * (n % 2)
            o = []
            for mat in range(2):
                for m in range(4):
                    for a in range(3):
                        o.append(f"v_mfma_f32_16x16x32_bf16 {vr(acc(m, mat, a), 4)}, {vr(st + 16 + 12*mat + 4*a, 4)}, {vr(st + 4*m, 4)}, "
                                 + ("0" if n == 0 else vr(acc(m, mat, a), 4)))
                for a in range(3):
                    o.append(f"v_mfma_f32_16x16x32_bf16 {vr(cs(mat, a), 4)}, {vr(st + 16 + 12*mat + 4*a, 4)}, v[36:39], "
                             + ("0" if n == 0 else vr(cs(mat, a), 4)))
            return o

        k("s_barrier")
        self.ts(25)
        k("s_barrier")
        self.ts(26)
        for r in reads(0):
            k(r)
        for n in range(20):
            k("s_waitcnt lgkmcnt(0)")
            if n % 2 == 1:
                k("s_barrier")
            side = reads(n + 1) if n < 19 else [f"ds_read_b128 {vr(160 + 4*m, 4)}, v11 offset:{m*256}" for m in range(4)]
            interleave(k, mfmas(n), side)
        self.ts(36)
        k("s_waitcnt lgkmcnt(0)")
        T = 176

        def pair(m, a, t, dst):
            G, U, st = acc(m, 0, a), acc(m, 1, a), 160 + 4 * m
            o = []
            for q in range(2):
                o.append(f"v_pk_fma_f32 {vr(G+2*q, 2)}, {vr(cs(0, a)+2*q, 2)}, {vr(st, 2)}, {vr(G+2*q, 2)} op_sel_hi:[1,0,1]")
            for q in range(2):
                o.append(f"v_pk_mul_f32 {vr(t+2*q, 2)}, {vr(G+2*q, 2)}, {vr(st, 2)} op_sel:[0,1] op_sel_hi:[1,1]")
            for q in range(4):
                o.append(f"v_exp_f32 v{t+q}, v{t+q}")
            for q in range(2):
                o.append(f"v_pk_fma_f32 {vr(U+2*q, 2)}, {vr(cs(1, a)+2*q, 2)}, {vr(st, 2)}, {vr(U+2*q, 2)} op_sel_hi:[1,0,1]")
            for q in range(2):
                o.append(f"v_pk_fma_f32 {vr(t+2*q, 2)}, {vr(t+2*q, 2)}, {vr(st+2, 2)}, {vr(st+2, 2)} op_sel_hi:[1,0,0]")
            for q in range(2):
                o.append(f"v_pk_mul_f32 {vr(G+2*q, 2)}, {vr(G+2*q, 2)}, {vr(U+2*q, 2)}")
            for q in range(4):
                o.append(f"v_rcp_f32 v{t+q}, v{t+q}")
            for q in range(2):
                o.append(f"v_pk_mul_f32 {vr(G+2*q, 2)}, {vr(G+2*q, 2)}, {vr(t+2*q, 2)}")
            o.append(f"v_cvt_pk_bf16_f32 v{dst}, v{G}, v{G+1}")
            o.append(f"v_cvt_pk_bf16_f32 v{dst+1}, v{G+2}, v{G+3}")
            return o

        for m in range(4):
            dst = 200 + 8 * m
            ps = [pair(m, a, T + 4 * a, dst + 2 * a) for a in range(3)]
            for x in zip(*ps):
                for y in x:
                    k(y)
            k(f"buffer_store_dwordx4 {vr(dst, 4)}, v52, {SWS}, 0 offen offset:{m*256}")
            k(f"buffer_store_dwordx2 {vr(dst+4, 2)}, v53, {SWS}, 0 offen offset:{m*256}")
        self.ts(37)
        self.signal(3)
        self.ts(38)
        k(f"s_cmp_ge_u32 {sR}, 30\ns_cbranch_scc1 L_fin")

    def comp_p4(self):
        k = self.k
        self.unpack_acc(240)
        k("v_lshrrev_b32 v56, 2, v1\nv_and_b32 v55, 3, v1")
        k(f"s_lshl_b32 s48, {sJ}, 7\ns_lshl_b32 s49, s64, 6\ns_add_u32 s48, s48, s49\nv_lshl_add_u32 v54, v55, 4, s48")
        k(f"v_mov_b32 v60, {OOB:#x}\ns_sub_u32 s49, s67, 1\ns_movk_i32 s50, 1280")
        for i in range(3):
            k(f"s_add_u32 s48, s66, {16*i}\nv_add_u32 v57, s48, v56\nv_lshlrev_b32 v58, 1, v57\nv_subrev_u32 v59, s49, v58")
            k(f"v_cmp_gt_u32 vcc, {sNP}, v57\nv_cndmask_b32 v58, v59, v58, vcc\nv_add_u32 v58, {sROW}, v58\nv_mad_u32_u24 v58, v58, s50, v54")
            k(f"v_cmp_gt_u32 vcc, s67, v57\nv_cndmask_b32 v{46+i}, v60, v58, vcc")
        k(f"s_mul_i32 s48, {sW}, 1280\ns_add_u32 s48, s48, {OUTST}\ns_movk_i32 s49, 80")
        k("v_lshl_add_u32 v57, v3, 3, s48\nv_mad_u32_u24 v49, v2, s49, v57\nv_lshl_add_u32 v57, v55, 4, s48\nv_mad_u32_u24 v50, v56, s49, v57")
        k("s_barrier")
        self.ts(39)
        last = self.gemm88(24, lambda s: W4P[s % 13], 40)
        for m in last:
            k(m)
        self.ts(41)
        for i in range(3):
            for a in range(2):
                s = 64 + 8 * i + 4 * a
                k(f"v_cvt_pk_bf16_f32 v{s}, v{s}, v{s+1}\nv_cvt_pk_bf16_f32 v{s+1}, v{s+2}, v{s+3}")
            k(f"ds_write2_b64 v49, {vr(64 + 8*i, 2)}, {vr(68 + 8*i, 2)} offset0:0 offset1:4")
            k(f"ds_read_b128 {vr(88 + 4*i, 4)}, v50")
        for i in range(3):
            k(f"s_waitcnt lgkmcnt({2*(2-i)})")
            k(f"buffer_store_dwordx4 {vr(88 + 4*i, 4)}, v{46+i}, {SOUT}, 0 offen")
        if self.o.get("ts"):
            k("s_waitcnt vmcnt(0)")
        self.ts(42)

    def comp_helper(self):
        k = self.k
        k("L_comp_helper:")
        self.hello_issue()
        self.hello_check()
        k("s_waitcnt lgkmcnt(0)\ns_barrier")
        k("s_branch L_comp_p3")

    def build(self):
        k = self.k
        self.prologue()
        self.loader_p1()
        self.loader_rest()
        self.loader_helper()
        self.comp_helper()
        self.comp_p1()
        self.attention()
        self.comp_p2()
        self.comp_p3()
        self.comp_p4()
        k("L_fin:")
        self.ts_flush()
        k("L_end:\ns_endpgm")
        body = k.finalize()
        kn = NAME + "_kernel"
        return (HDR + "; One persistent launch: 256 workgroups (8 groups of 32), 4 MFMA waves + 4 loader waves each.\n"
                "; @launch grid=(256,1,1) block=(512,1,1) lds=163840\n"
                '.amdgcn_target "amdgcn-amd-amdhsa--gfx950"\n.text\n'
                f".globl {kn}\n.p2align 8\n.type {kn},@function\n{kn}:\n" + body +
                '.section .rodata,"a"\n.p2align 6\n'
                f".amdhsa_kernel {kn}\n  .amdhsa_next_free_vgpr 256\n  .amdhsa_next_free_sgpr 96\n  .amdhsa_accum_offset 256\n"
                "  .amdhsa_group_segment_fixed_size 0\n  .amdhsa_kernarg_size 80\n  .amdhsa_user_sgpr_count 2\n"
                "  .amdhsa_user_sgpr_kernarg_segment_ptr 1\n  .amdhsa_system_sgpr_workgroup_id_x 1\n"
                "  .amdhsa_float_denorm_mode_32 3\n.end_amdhsa_kernel\n")


if __name__ == "__main__":
    out = sys.argv[1]
    opt = {}
    for a in sys.argv[2:]:
        kk, vv = a.split("=")
        opt[kk] = int(vv)
    g = Gen(opt)
    open(out, "w").write(g.build())
    print(f"wrote {out}: {len(g.k.ins)} lines, {g.k.nops} hazard nops")
```

```python
import sys, struct
from asmfw import K, VM

NAME = "sequential_preLN__sliding_local_dilated__glu_gated_swiglu__prompt"
HDR = open(f"cdna_kernels/{NAME}.s.ref").read().split("; Override launch")[0]

GS = 2 << 20
OBUF = 0
HBUF = 786432
STAT2 = HBUF + 327680
EXPB = STAT2 + 40960
FLAGS = EXPB + 32 * 5376
TSB = FLAGS + 1024
XS = lambda s: s * 14336
W1S = lambda s: 57344 + s * 24576
MISC = 155648
STAT1 = MISC
PUREW = MISC + 896
STAT3 = MISC + 1024
OUTST = MISC + 3072
IMG, RS, PB = 53248, 496, 52 * 496 + 8
WOP = [106496 + 8192 * i for i in range(6)] + [28672 + 8192 * i for i in range(3)] + [0]
XRES = 14336
A2S = lambda s: 53248 + s * 11264
W3S = [106496, 131072, 0, 24576]
A3S = lambda s: 49152 + s * 16384
W4P = [8192 * i for i in range(6)] + [106496 + 8192 * i for i in range(6)] + [98304]
OOB = 0x80000000
SPIN = 200000

f2u = lambda x: struct.unpack("<I", struct.pack("<f", x))[0]
LOG2E = 1.4426950408889634
QSCALE = (20 ** -0.5) * LOG2E

SX, SWQ, SWO, SW1, SW3, SW2, SOUT, SWS, SDBG = ("s[4:7]", "s[8:11]", "s[12:15]", "s[16:19]", "s[20:23]",
                                                "s[24:27]", "s[28:31]", "s[32:35]", "s[36:39]")
sW, sG, sR, sT, sJ, sJM, sLW, sSLOW = "s40", "s41", "s42", "s43", "s44", "s45", "s46", "s47"
sNP, sFLAG, sROW, sXCC = "s54", "s55", "s62", "s63"


def vr(a, n=1):
    return f"v{a}" if n == 1 else f"v[{a}:{a+n-1}]"


def interleave(k, main, side, first=1, every=1):
    si = 0
    for i, m in enumerate(main):
        k(m)
        if i + 1 >= first and (i + 1 - first) % every == 0 and si < len(side):
            k(side[si])
            si += 1
    while si < len(side):
        k(side[si])
        si += 1


class Gen:
    def __init__(self, opt):
        self.o = opt
        self.k = K()
        self.nts = {"c": 0, "l": 0}

    def ts(self, n):
        if "pb" in self.o:
            if n == self.o.get("pa", -1):
                self.k("s_memrealtime s[88:89]\ns_waitcnt lgkmcnt(0)")
            if n == self.o["pb"]:
                self.k("s_memrealtime s[90:91]\ns_waitcnt lgkmcnt(0)")
        if not self.o.get("ts"):
            return
        self.k(f"s_memtime s[84:85]\ns_waitcnt lgkmcnt(0)\nv_writelane_b32 v63, s84, {n}")

    def ts_flush(self):
        if "pb" in self.o:
            k = self.k
            k(f"s_cmp_lg_u32 {sW}, {self.o.get('pw', 0)}\ns_cbranch_scc1 L_end\ns_cmp_ge_u32 {sR}, 30\ns_cbranch_scc1 L_end")
            k("s_sub_u32 s48, s90, s88\ns_mul_i32 s48, s48, 10\ns_min_u32 s48, s48, 100000\ns_memrealtime s[88:89]\ns_waitcnt lgkmcnt(0)")
            k("L_spin:\ns_memrealtime s[90:91]\ns_waitcnt lgkmcnt(0)\ns_sub_u32 s49, s90, s88\ns_cmp_lt_u32 s49, s48\ns_cbranch_scc1 L_spin")
        if not self.o.get("ts"):
            return
        k = self.k
        skip = k.lab("L_tsskip")
        k(f"s_and_b32 s48, {sW}, 3\ns_cmp_lg_u32 s48, 0\ns_cbranch_scc1 {skip}")
        k(f"s_memrealtime s[84:85]\ns_waitcnt lgkmcnt(0)\nv_writelane_b32 v63, s84, 62\nv_writelane_b32 v63, {sXCC}, 63")
        k(f"s_lshl_b32 s48, {sR}, 9\ns_lshr_b32 s49, {sW}, 2\ns_lshl_b32 s49, s49, 8\ns_add_u32 s48, s48, s49\ns_add_u32 s48, s48, {TSB}")
        k(f"v_lshlrev_b32 v62, 2, v1\nbuffer_store_dword v63, v62, {SWS}, s48 offen")
        k(f"{skip}:")

    def signal(self, kind, byte_is_wave=True):
        k = self.k
        fast, done = k.lab("L_sigf"), k.lab("L_sigd")
        k("v_mov_b32 v60, 1")
        if byte_is_wave:
            k(f"s_add_u32 s48, {sFLAG}, {sW}")
        else:
            k(f"s_mov_b32 s48, {sFLAG}")
        k(f"s_cmp_eq_u32 {sSLOW}, 0")
        k("s_mov_b64 exec, 1")
        k("s_waitcnt vmcnt(0)")
        k(f"s_cbranch_scc1 {fast}")
        k("buffer_wbl2 sc1\ns_waitcnt vmcnt(0)")
        k(f"buffer_store_byte v60, off, {SWS}, s48 offset:{kind*256} sc1")
        k(f"s_branch {done}")
        k(f"{fast}:")
        k(f"buffer_store_byte v60, off, {SWS}, s48 offset:{kind*256}")
        k(f"{done}:")
        k("s_mov_b64 exec, -1")

    def poll(self, kind, both, want=0x01010101):
        k = self.k
        loop, out, done = k.lab("L_poll"), k.lab("L_pollo"), k.lab("L_polld")
        k(f"s_mov_b32 s48, 0\ns_mov_b32 s49, {want}")
        k(f"{loop}:")
        if both:
            k(f"buffer_load_dwordx2 v[58:59], v61, {SWS}, 0 offen offset:{kind*256} sc1")
        else:
            k(f"buffer_load_dword v58, v61, {SWS}, 0 offen offset:{kind*256} sc1")
        k(f"s_add_u32 s48, s48, 1\ns_cmp_gt_u32 s48, {SPIN}\ns_cbranch_scc1 {out}")
        k("s_waitcnt vmcnt(0)")
        if both:
            k("v_and_b32 v58, v58, v59")
        k("v_cmp_ne_u32 vcc, s49, v58")
        k(f"s_cbranch_vccnz {loop}")
        k(f"{out}:")
        k(f"s_cmp_eq_u32 {sSLOW}, 0\ns_cbranch_scc1 {done}")
        k("buffer_inv sc1\ns_waitcnt vmcnt(0)")
        k(f"{done}:")
        k("s_mov_b64 exec, -1")

    def hello_issue(self):
        self.k(f"s_lshl_b32 s48, {sG}, 5\nbuffer_load_dword v11, off, {SDBG}, s48 sc1")

    def hello_check(self):
        k = self.k
        loop, ok = k.lab("L_hl"), k.lab("L_hok")
        k("s_mov_b32 s50, 0")
        k(f"{loop}:")
        k("s_waitcnt vmcnt(0)\nv_readfirstlane_b32 s49, v11")
        k(f"s_add_u32 s50, s50, 1\ns_and_b32 s51, s49, 0xff\ns_cmp_eq_u32 s51, 32\ns_cbranch_scc1 {ok}")
        k(f"s_cmp_gt_u32 s50, {SPIN}\ns_cbranch_scc1 {ok}")
        k("s_sleep 4")
        self.hello_issue()
        k(f"s_branch {loop}")
        k(f"{ok}:")
        k(f"s_mul_i32 s50, {sXCC}, {sXCC}\ns_lshl_b32 s50, s50, 16\ns_lshl_b32 s51, {sXCC}, 8\ns_add_u32 s50, s50, s51")
        k("s_add_u32 s50, s50, 1\ns_lshl_b32 s50, s50, 5")
        k(f"s_cmp_lg_u32 s50, s49\ns_cselect_b32 {sSLOW}, 1, 0")
        if self.o.get("force_slow"):
            k(f"s_mov_b32 {sSLOW}, 1")
        k(f"v_mov_b32 v11, {sSLOW}\nv_mov_b32 v60, {PUREW}\nds_write_b32 v60, v11")

    def read_pure(self):
        k = self.k
        k(f"v_mov_b32 v60, {PUREW}\nds_read_b32 v60, v60\ns_waitcnt lgkmcnt(0)\nv_readfirstlane_b32 {sSLOW}, v60")

    def prologue(self):
        k = self.k
        k("s_cmp_ge_u32 s2, 256\ns_cbranch_scc1 L_end")
        k("s_load_dwordx16 s[64:79], s[0:1], 0\ns_load_dwordx4 s[80:83], s[0:1], 64")
        if self.o.get("ts"):
            k("s_memrealtime s[86:87]\ns_memtime s[84:85]")
        if "pb" in self.o:
            k("s_memrealtime s[88:89]\ns_memrealtime s[90:91]")
        k("v_lshrrev_b32 v1, 6, v0")
        if self.o.get("perm"):
            k(f"s_lshr_b32 {sG}, s2, 5\ns_and_b32 {sR}, s2, 31")
        else:
            k(f"s_and_b32 {sG}, s2, 7\ns_lshr_b32 {sR}, s2, 3")
        k(f"v_readfirstlane_b32 {sW}, v1")
        k("v_and_b32 v1, 63, v0\nv_and_b32 v2, 15, v0\nv_lshrrev_b32 v3, 4, v1")
        k(f"s_mul_i32 {sT}, {sR}, 26\ns_lshr_b32 {sT}, {sT}, 8\ns_mul_i32 s48, {sT}, 10\ns_sub_u32 {sJ}, {sR}, s48")
        k(f"s_cmp_ge_u32 {sR}, 30\ns_cselect_b32 {sT}, 0, {sT}")
        k(f"s_sub_u32 s48, {sJ}, 5\ns_cmp_ge_u32 {sJ}, 5\ns_cselect_b32 {sJM}, s48, {sJ}")
        k(f"s_cmp_eq_u32 {sT}, 2\ns_cselect_b32 {sNP}, 40, 44")
        k(f"s_lshl_b32 {sROW}, {sG}, 8\ns_mul_i32 s48, {sT}, 88\ns_add_u32 {sROW}, {sROW}, s48")
        k(f"s_lshl_b32 {sFLAG}, {sR}, 3\ns_add_u32 {sFLAG}, {sFLAG}, {FLAGS}")
        k(f"s_getreg_b32 {sXCC}, hwreg(HW_REG_XCC_ID)\ns_and_b32 {sXCC}, {sXCC}, 7")
        k(f"s_and_b32 {sLW}, {sW}, 3\ns_lshl_b32 {sLW}, {sLW}, 10")
        k(f"s_mov_b32 {sSLOW}, 1")
        for b, n in ((4, 2621440), (8, 2457600), (12, 819200), (16, 1966080), (20, 1966080), (24, 1966080),
                     (28, 2621440), (32, GS), (36, 256)):
            k(f"s_mov_b32 s{b+2}, {n}\ns_mov_b32 s{b+3}, 0x20000")
        k(f"s_lshl_b32 s48, {sG}, 21")
        k("s_waitcnt lgkmcnt(0)")
        for b, p in ((4, 64), (8, 66), (12, 68), (16, 72), (20, 74), (24, 76), (28, 78), (36, 80)):
            k(f"s_mov_b64 s[{b}:{b+1}], s[{p}:{p+1}]")
        k("s_add_u32 s32, s82, s48\ns_addc_u32 s33, s83, 0")
        if self.o.get("ts"):
            k("v_mov_b32 v63, 0\nv_writelane_b32 v63, s84, 0\nv_writelane_b32 v63, s86, 61")
        k(f"s_cmp_lt_u32 {sW}, 4\ns_cbranch_scc1 L_comp")
        k("s_mov_b32 s3, 1")
        k(f"s_cmp_ge_u32 {sR}, 30\ns_cbranch_scc1 L_ld_helper")

    def attn_setup(self):
        k = self.k
        k(f"s_and_b32 s64, {sW}, 3\ns_lshr_b32 s65, {sW}, 2")
        k(f"s_mul_i32 s66, {sJM}, 3\ns_cmp_ge_u32 {sJM}, 3\ns_addc_u32 s66, s66, s64")
        k(f"s_mul_i32 s67, s66, 40\ns_lshl_b32 s48, {sJM}, 7\ns_sub_u32 s67, s67, s48\ns_add_u32 s67, s67, {IMG+16}")
        k(f"s_cmp_ge_u32 {sJ}, 5\ns_cselect_b32 s48, 16, 0\ns_add_u32 s66, s66, s48")
        k(f"s_mul_i32 s72, s65, {PB}\ns_add_u32 s67, s67, s72")
        k(f"s_cmp_eq_u32 {sJM}, 2\ns_cselect_b32 s48, 4, 3\ns_cmp_lt_u32 s64, s48\ns_cselect_b32 s68, 1, 0")
        k(f"s_sub_u32 s48, {sJM}, 1\ns_cmp_lt_u32 s48, 2\ns_cselect_b32 s49, 1, 0\ns_cmp_eq_u32 s64, 0\ns_cselect_b32 s49, s49, 0")
        k(f"s_sub_u32 s48, {sJM}, 2\ns_cmp_lt_u32 s48, 2\ns_cselect_b32 s50, 1, 0\ns_add_u32 s48, s64, {sJM}\ns_cmp_eq_u32 s48, 5\ns_cselect_b32 s50, s50, 0")
        k(f"s_or_b32 s69, s49, s50\ns_add_u32 s70, {sR}, s50\ns_sub_u32 s70, s70, s49\ns_mul_i32 s71, s50, 144")
        k(f"v_lshlrev_b32 v60, 2, v3\nv_sub_u32 v59, v2, v60\nv_mov_b32 v58, {f2u(-1e30):#x}")
        k(f"s_or_b32 s48, {sG}, {sT}\ns_cmp_eq_u32 s48, 0\ns_cselect_b32 s48, 8, 0")
        for r in range(4):
            k(f"v_add_u32 v57, {8-r}, v59\nv_cmp_gt_u32 vcc, 8, v57\nv_cndmask_b32 v{224+r}, v58, 0, vcc")
            k(f"v_subrev_u32 v57, {8+r}, v59\nv_cmp_gt_u32 vcc, 8, v57\nv_cndmask_b32 v{228+r}, v58, 0, vcc")
            k(f"v_add_u32 v57, {r}, v60\nv_cmp_gt_u32 vcc, s48, v57\nv_cndmask_b32 v{232+r}, v{224+r}, v58, vcc")
            k(f"v_mov_b32 v{236+r}, 0x3f803f80")
        k(f"s_movk_i32 s48, {RS}")
        k("v_mul_u32_u24 v57, s48, v2\nv_add_u32 v57, s67, v57")
        k("v_lshl_add_u32 v240, v3, 3, v57\nv_add_u32 v241, 32, v57")
        k("v_min_u32 v57, 3, v2\nv_mul_u32_u24 v57, s48, v57\nv_add_u32 v57, s67, v57")
        k("v_lshl_add_u32 v242, v3, 3, v57\nv_add_u32 v243, 32, v57")
        k("v_lshrrev_b32 v57, 2, v1\nv_and_b32 v56, 3, v1\nv_lshlrev_b32 v56, 3, v56\nv_add_u32 v56, s67, v56")
        k("v_mad_u32_u24 v244, v57, s48, v56")
        k("v_min_u32 v57, 3, v57\nv_mad_u32_u24 v245, v57, s48, v56")
        k(f"s_mul_i32 s49, {sT}, 88\ns_mul_i32 s50, {sNP}, s65\ns_add_u32 s49, s49, s50\ns_lshl_b32 s49, s49, 4")
        k("s_and_b32 s50, s66, 1\ns_lshl_b32 s50, s50, 3\ns_add_u32 s49, s49, s50")
        k(f"s_lshr_b32 s50, s66, 1\ns_lshl_b32 s51, s50, 14\ns_add_u32 s51, s51, s49")
        k("v_lshlrev_b32 v57, 4, v2\nv_lshl_add_u32 v246, v3, 12, v57\nv_add_u32 v246, s51, v246")
        k(f"s_add_u32 s50, s50, 64\ns_lshl_b32 s50, s50, 12\ns_add_u32 s50, s50, s49")
        k(f"v_add_u32 v248, s50, v57\nv_mov_b32 v58, {OOB:#x}\nv_cmp_eq_u32 vcc, 0, v3\nv_cndmask_b32 v248, v58, v248, vcc")
        k(f"s_sub_u32 s50, {sNP}, 32\nv_cmp_gt_u32 vcc, s50, v2\nv_cndmask_b32 v247, v58, v246, vcc\nv_cndmask_b32 v249, v58, v248, vcc")
        k(f"s_mul_i32 s49, s70, 5376\ns_lshl_b32 s50, s65, 4\ns_add_u32 s49, s49, s50\ns_add_u32 s49, s49, {EXPB}")
        k("v_lshlrev_b32 v250, 5, v1\nv_add_u32 v250, s49, v250")
        k(f"s_add_u32 s49, s72, s71\ns_add_u32 s49, s49, {IMG}\nv_mul_u32_u24 v251, s48, v1\nv_add_u32 v251, s49, v251")

    def ld_p1_stage(self, vm, i):
        k = self.k
        s = i % 4
        k("s_lshl_b32 s56, s50, 7\ns_mul_i32 s57, s50, 245760\ns_add_u32 s58, s57, 122880")
        for q in range(3):
            k(f"s_add_u32 m0, {sLW}, {XS(s) + q*4096}")
            vm.issue(("p1", i), f"buffer_load_dwordx4 v{6+q}, {SX}, s56 offen lds")
        k(f"s_mov_b32 m0, {XS(s) + 12288}\ns_mov_b64 exec, s[52:53]")
        vm.issue(("p1", i), f"buffer_load_dwordx4 v9, {SX}, s56 offen lds")
        k("s_mov_b64 exec, -1")
        for hf in range(2):
            for mat in range(3):
                k(f"s_add_u32 m0, {sLW}, {W1S(s) + mat*8192 + hf*4096 - mat*1280}")
                vm.issue(("p1", i), f"buffer_load_dwordx4 v10, {SWQ}, s{57+hf} offen offset:{mat*1280} lds")
        k("s_add_u32 s50, s50, 1\ns_cmp_eq_u32 s50, 10\ns_cselect_b32 s50, 0, s50")

    def ld_wo_piece(self, vm, p):
        k = self.k
        for hf in range(2):
            ks = 2 * p + hf
            if ks < 16:
                k(f"s_add_u32 s56, s73, {40*ks*1280}")
            else:
                k(f"s_add_u32 s56, s74, {160*(ks-16)*1280}")
            k(f"s_add_u32 m0, {sLW}, {WOP[p] + hf*4096}")
            vm.issue(("wo", p), f"buffer_load_dwordx4 v12, {SWO}, s56 offen lds")

    def ld_stats(self, i):
        k = self.k
        s = i % 4
        for q in range(3):
            k(f"ds_read_b128 v[{20+4*q}:{23+4*q}], v18 offset:{XS(s) + q*4096}")
        k(f"ds_read_b128 v[32:35], v19 offset:{XS(s) + 12288}")
        for q in range(4):
            k(f"s_waitcnt lgkmcnt({3-q})")
            for d in range(4):
                k(f"v_dot2c_f32_bf16 v{36+q}, v{20+4*q+d}, v44")
                k(f"v_dot2c_f32_bf16 v{40+q}, v{20+4*q+d}, v{20+4*q+d}")

    def ld_common_setup(self):
        k = self.k
        k(f"s_lshl_b32 s48, {sJ}, 7")
        k("v_lshrrev_b32 v57, 5, v1\nv_and_b32 v56, 3, v4")
        k("v_mad_u32_u24 v58, v57, 20, v56\ns_movk_i32 s49, 1280\nv_mad_u32_u24 v12, v58, s49, v13")
        k("v_lshl_add_u32 v58, v57, 4, v56\nv_mad_u32_u24 v14, v58, s49, v13")
        k("s_mul_i32 s73, s51, 5120\ns_mul_i32 s74, s51, 51200\ns_add_u32 s74, s74, 20480")
        k(f"s_mul_i32 s48, {sT}, 88\ns_lshl_b32 s49, s51, 8\ns_add_u32 s48, s48, s49\ns_lshl_b32 s48, s48, 4")
        k("v_lshl_add_u32 v15, v1, 4, s48")
        k(f"v_add_u32 v16, 1024, v15\nv_add_u32 v57, {16384 - 88*16}, v16\nv_cmp_gt_u32 vcc, 24, v1\nv_cndmask_b32 v16, v57, v16, vcc")
        k(f"v_add_u32 v17, {2048 + 16384 - 88*16}, v15")
        k("s_mul_i32 s75, s51, 2816")
        k("s_bfm_b64 s[76:77], 48, 0")
        k(f"s_and_b32 s48, {sR}, 15\ns_mul_i32 s48, s48, 192\ns_mul_i32 s49, s51, {16*3072}\ns_add_u32 s48, s48, s49")
        k("s_movk_i32 s49, 3072")
        for i in range(3):
            k(f"v_add_u32 v57, {64*i}, v1\nv_mul_u32_u24 v58, 0x1556, v57\nv_lshrrev_b32 v58, 16, v58")
            k("v_mul_u32_u24 v59, 12, v58\nv_sub_u32 v57, v57, v59")
            k("v_lshrrev_b32 v59, 1, v58\nv_and_b32 v59, 2, v59\nv_xor_b32 v57, v57, v59")
            k(f"v_lshl_add_u32 v57, v57, 4, s48\nv_mad_u32_u24 v{45+i}, v58, s49, v57")
        k("s_mul_i32 s78, s51, 3072")
        k(f"s_lshr_b32 s48, {sR}, 4\ns_lshl_b32 s49, s48, 11\ns_lshl_b32 s56, s51, 12\ns_add_u32 s49, s49, s56\ns_add_u32 s49, s49, {HBUF}")
        k("v_lshl_add_u32 v48, v1, 4, s49")
        k("s_lshl_b32 s79, s51, 11")
        k(f"s_lshl_b32 s49, s48, 10\ns_lshl_b32 s56, s51, 8\ns_add_u32 s49, s49, s56\ns_add_u32 s49, s49, {STAT2}")
        k("v_and_b32 v57, 31, v1\nv_lshrrev_b32 v58, 5, v1\nv_lshlrev_b32 v58, 11, v58\nv_lshl_add_u32 v49, v57, 3, v58\nv_add_u32 v49, s49, v49")
        k(f"s_lshl_b32 s49, s51, 9\ns_add_u32 s49, s49, {STAT3}\nv_lshl_add_u32 v50, v57, 4, s49")
        k(f"v_lshlrev_b32 v61, 3, v1\nv_add_u32 v61, {FLAGS}, v61")

    def ld_lane_basics(self):
        k = self.k
        k(f"s_and_b32 s51, {sW}, 3")
        k("v_lshrrev_b32 v4, 3, v1\nv_and_b32 v5, 7, v1")
        k("s_and_b32 s48, s51, 1\ns_lshl_b32 s48, s48, 2")
        k(f"v_and_b32 v57, 1, v3\nv_lshlrev_b32 v57, 1, v57\nv_or_b32 v57, s48, v57\nv_xor_b32 v57, v57, v5")
        k(f"s_lshl_b32 s49, {sJ}, 7\nv_lshl_add_u32 v13, v57, 4, s49")

    def loader_p1(self):
        k = self.k
        vm = VM(k)
        self.ld_lane_basics()
        k(f"s_lshl_b32 s49, s51, 3\ns_add_u32 s56, {sROW}, s49\ns_sub_u32 s56, s56, 16")
        k("v_add_u32 v57, s56, v4\ns_movk_i32 s57, 1280\nv_mul_lo_u32 v57, v57, s57")
        k("v_or_b32 v58, s48, v3\nv_xor_b32 v58, v58, v5\nv_lshl_add_u32 v6, v58, 4, v57")
        k(f"v_add_u32 v7, {32*1280}, v6\nv_add_u32 v8, {64*1280}, v6")
        k(f"s_add_u32 s56, {sROW}, 80\nv_add_u32 v57, s56, v4\nv_mul_lo_u32 v57, v57, s57")
        k("v_xor_b32 v58, v3, v5\nv_lshl_add_u32 v9, v58, 4, v57")
        k("v_add_u32 v57, s49, v4\ns_movk_i32 s57, 3840\nv_mad_u32_u24 v10, v57, s57, v13")
        k("s_lshl_b32 s49, s51, 4\ns_bfm_b64 s[52:53], 16, s49")
        if self.o.get("rot", 1):
            k(f"s_mul_i32 s50, {sG}, 10\ns_lshr_b32 s50, s50, 3")
        else:
            k("s_mov_b32 s50, 0")
        for i in range(4):
            self.ld_p1_stage(vm, i)
        self.ts(1)
        k("s_mov_b32 s80, s50")
        self.attn_setup()
        k(f"s_and_b32 s51, {sW}, 3")
        self.ld_common_setup()
        for i in range(3):
            k(f"s_mul_i32 s48, s51, 22\ns_add_u32 s48, s48, {8*i}\nv_add_u32 v57, s48, v4")
            k(f"v_lshlrev_b32 v58, 1, v57\ns_lshl_b32 s49, {sNP}, 1\ns_sub_u32 s49, s49, 1\nv_subrev_u32 v59, s49, v58")
            k(f"v_cmp_gt_u32 vcc, {sNP}, v57\nv_cndmask_b32 v58, v59, v58, vcc\nv_add_u32 v58, {sROW}, v58")
            k(f"v_and_b32 v59, 7, v57\nv_xor_b32 v59, v59, v5\ns_lshl_b32 s49, {sJ}, 7\nv_lshl_add_u32 v59, v59, 4, s49")
            k(f"s_movk_i32 s49, 1280\nv_mad_u32_u24 v{51+i}, v58, s49, v59")
        k("s_mov_b32 s50, s80")
        k(f"v_lshlrev_b32 v19, 4, v1\nv_add_u32 v18, {sLW}, v19\nv_mov_b32 v44, 0x3f803f80")
        for q in range(8):
            k(f"v_mov_b32 v{36+q}, 0")
        for i in range(10):
            vm.wait(("p1", i))
            k("s_barrier")
            self.ts(2 + i)
            if 1 <= i <= 6:
                self.ld_p1_stage(vm, i + 3)
            if i == 7:
                for p in (0, 1, 2, 6):
                    self.ld_wo_piece(vm, p)
            if i == 8:
                for p in (3, 4, 5, 7, 8):
                    self.ld_wo_piece(vm, p)
            self.ld_stats(i)
        for ctl in ("quad_perm:[1,0,3,2]", "quad_perm:[2,3,0,1]", "row_half_mirror"):
            for q in range(8):
                k(f"v_add_f32_dpp v{36+q}, v{36+q}, v{36+q} {ctl} row_mask:0xf bank_mask:0xf")
        k(f"s_mov_b32 s48, {f2u(1.0/640):#x}\ns_mov_b32 s49, {f2u(1e-5):#x}")
        for q in range(4):
            k(f"v_mul_f32 v{21+2*q}, s48, v{36+q}\nv_mul_f32 v{40+q}, s48, v{40+q}")
        for q in range(4):
            k(f"v_fma_f32 v{40+q}, -v{21+2*q}, v{21+2*q}, v{40+q}")
        for q in range(4):
            k(f"v_max_f32 v{40+q}, 0, v{40+q}")
        for q in range(4):
            k(f"v_add_f32 v{40+q}, s49, v{40+q}")
        for q in range(4):
            k(f"v_rsq_f32 v{20+2*q}, v{40+q}")
        for q in range(4):
            k(f"v_sub_f32 v{21+2*q}, 0, v{21+2*q}")
        k(f"s_lshl_b32 s48, s51, 6\nv_lshlrev_b32 v57, 3, v4\nv_add_u32 v57, {STAT1}, v57\nv_add_u32 v58, s48, v57")
        k("s_mov_b32 s48, 0x01010101\ns_mov_b32 s49, s48\ns_mov_b64 exec, s[48:49]")
        for q in range(3):
            k(f"ds_write_b64 v58, v[{20+2*q}:{21+2*q}] offset:{q*256}")
        k("s_and_b64 exec, s[48:49], s[52:53]")
        k("ds_write_b64 v57, v[26:27] offset:768")
        k("s_mov_b64 exec, -1")
        self.ld_wo_piece(vm, 9)
        k("s_waitcnt lgkmcnt(0)\ns_barrier")
        self.ts(12)
        for i in range(3):
            k(f"s_add_u32 m0, s75, {XRES + i*1024}")
            if i == 2:
                k("s_mov_b64 exec, s[76:77]")
            vm.issue("xres", f"buffer_load_dwordx4 v{51+i}, {SX}, 0 offen lds")
        k("s_mov_b64 exec, -1")
        self.read_pure()
        k("s_branch L_attn")

    def ld_act88(self, vm, tag, s, slot):
        k = self.k
        k(f"s_mov_b32 s56, {OBUF + s*32768}")
        for i in range(3):
            k(f"s_add_u32 m0, s75, {A2S(slot) + i*1024}")
            if i == 2:
                k("s_mov_b64 exec, s[76:77]")
            vm.issue(tag, f"buffer_load_dwordx4 v{15+i}, {SWS}, s56 offen sc1 lds")
        k("s_mov_b64 exec, -1")

    def ld_w3_stage(self, vm, i):
        k = self.k
        k(f"s_mov_b32 s56, {i*64*3072}")
        for mat, srd in enumerate((SW1, SW3)):
            for q in range(3):
                k(f"s_add_u32 m0, s78, {W3S[i % 4] + mat*12288 + q*1024}")
                vm.issue(("w3", i), f"buffer_load_dwordx4 v{45+q}, {srd}, s56 offen lds")

    def ld_a3_stage(self, vm, i):
        k = self.k
        for ksub in range(2):
            k(f"s_mov_b32 s56, {(2*i + ksub)*16384}")
            k(f"s_add_u32 m0, s79, {A3S(i % 3) + ksub*8192}")
            for q in range(2):
                vm.issue(("a3", i), f"buffer_load_dwordx4 v48, {SWS}, s56 offen offset:{q*1024} sc1 lds")

    def ld_w4_piece(self, vm, p):
        k = self.k
        for hf in range(2):
            k(f"s_add_u32 s56, s73, {(64*p + 32*hf)*1280}")
            k(f"s_add_u32 m0, {sLW}, {W4P[p % 13] + hf*4096}")
            vm.issue(("w4", p), f"buffer_load_dwordx4 v14, {SW2}, s56 offen lds")

    def ld_poll(self, kind, both, maskcode):
        k = self.k
        skip = k.lab("L_np")
        k(f"s_cmp_lg_u32 {sW}, 4\ns_cbranch_scc1 {skip}")
        k(maskcode)
        self.poll(kind, both)
        k(f"{skip}:")
        k("s_barrier")

    def loader_rest(self):
        k = self.k
        vm = VM(k)
        k("L_ld_p2:")
        self.ts(20)
        self.ld_poll(1, True, f"s_mul_i32 s48, {sT}, 10\ns_bfm_b64 exec, 10, s48")
        self.ts(21)
        for i in range(4):
            self.ld_act88(vm, ("a2", i), i, i)
        for i in range(10):
            vm.wait(("a2", i))
            k("s_barrier")
            if i in (0, 9):
                self.ts(22 + (i == 9))
            if 1 <= i <= 6:
                self.ld_act88(vm, ("a2", i + 3), i + 3, (i + 3) % 4)
            if i == 7:
                self.ld_w3_stage(vm, 0)
            if i == 8 and self.o.get("w3pre", 2) >= 2:
                self.ld_w3_stage(vm, 1)
        k("s_barrier")
        k("L_ld_p3:")
        npre = self.o.get("w3pre", 2)
        for i in range(2, npre):
            self.ld_w3_stage(vm, i)
        self.ts(24)
        self.ld_poll(2, False, f"s_lshr_b32 s48, {sR}, 4\ns_mul_i32 s48, s48, 10\ns_bfm_b64 exec, 20, s48")
        self.ts(25)
        for i in range(4):
            if i < 3:
                self.ld_a3_stage(vm, i)
            if i >= npre:
                self.ld_w3_stage(vm, i)
        for i in range(10):
            vm.wait(("a3", i), ("w3", i))
            if i == 5:
                k("s_waitcnt lgkmcnt(0)")
            k("s_barrier")
            self.ts(26 + i)
            if i >= 1 and i + 2 <= 9:
                self.ld_a3_stage(vm, i + 2)
            if i >= 1 and i + 3 <= 9:
                self.ld_w3_stage(vm, i + 3)
            if i == 0:
                for q in range(10):
                    k(f"s_mov_b32 s56, {q*4096}")
                    vm.issue("st", f"buffer_load_dwordx2 v[{20+2*q}:{21+2*q}], v49, {SWS}, s56 offen sc1")
            if i == 4:
                vm.wait("st")
                for q in range(1, 10):
                    k(f"v_pk_add_f32 v[20:21], v[20:21], v[{20+2*q}:{21+2*q}]")
                k("v_mov_b32 v22, v20\nv_mov_b32 v23, v21")
                k("v_permlane32_swap_b32 v22, v20\nv_permlane32_swap_b32 v23, v21")
                k(f"s_mov_b32 s48, {f2u(1.0/640):#x}\ns_mov_b32 s49, {f2u(1e-5):#x}")
                k("v_add_f32 v20, v20, v22\nv_add_f32 v21, v21, v23")
                k("v_mul_f32 v20, s48, v20\nv_mul_f32 v21, s48, v21")
                k("v_fma_f32 v21, -v20, v20, v21\nv_max_f32 v21, 0, v21\nv_add_f32 v26, s49, v21")
                k(f"v_rsq_f32 v25, v26\nv_sub_f32 v24, 0, v20\nv_mov_b32 v27, 0\nv_mul_f32 v25, {f2u(-LOG2E):#x}, v25")
                k("s_mov_b64 exec, 0xffffffff\nds_write_b128 v50, v[24:27]\ns_mov_b64 exec, -1")
            w4pre = self.o.get("w4pre", 9)
            if i >= 7:
                for p in range(3 * (i - 7), 3 * (i - 6)):
                    if p < w4pre:
                        self.ld_w4_piece(vm, p)
        k("s_barrier")
        k(f"s_cmp_ge_u32 {sR}, 30\ns_cbranch_scc1 L_ld_help2")
        for p in range(9, w4pre):
            self.ld_w4_piece(vm, p)
        self.ts(36)
        self.ld_poll(3, False, f"s_cmp_eq_u32 {sT}, 1\ns_cselect_b32 s48, 32, 16\ns_cmp_eq_u32 {sT}, 2\ns_cselect_b32 s49, 16, 0\ns_bfm_b64 exec, s48, s49")
        self.ts(37)
        nxt = w4pre
        for i in range(4):
            self.ld_act88(vm, ("a4", i), i, i)
            while nxt <= i:
                self.ld_w4_piece(vm, nxt)
                nxt += 1
        lead = self.o.get("w4lead", 4)
        for i in range(24):
            vm.wait(("a4", i), ("w4", i))
            k("s_barrier")
            if i in (0, 8, 16, 23):
                self.ts(38 + (i + 1) // 8)
            if i >= 1 and i + 3 <= 23:
                self.ld_act88(vm, ("a4", i + 3), i + 3, (i + 3) % 4)
            target = min(24, max(i + lead, w4pre + ((24 - w4pre) * (i + 1) + 19) // 20))
            while nxt < target and nxt - 12 <= i:
                self.ld_w4_piece(vm, nxt)
                nxt += 1
        assert nxt == 24
        k("s_branch L_fin")

    def loader_helper(self):
        k = self.k
        vm = VM(k)
        k("L_ld_helper:")
        self.ld_lane_basics()
        self.ld_common_setup()
        for i in range(min(2, self.o.get("w3pre", 2))):
            self.ld_w3_stage(vm, i)
        k("s_barrier")
        self.read_pure()
        k("s_branch L_ld_p3")
        k("L_ld_help2:")
        if self.o.get("wb"):
            k(f"s_cmp_lg_u32 {sR}, 31\ns_cbranch_scc1 L_fin\ns_cmp_lg_u32 {sW}, 4\ns_cbranch_scc1 L_fin")
            k("s_bfm_b64 exec, 32, 0")
            self.poll(3, False)
            k("buffer_wbl2 sc1\ns_waitcnt vmcnt(0)")
        k("s_branch L_fin")

    def comp_p1(self):
        k = self.k
        k("L_comp:")
        k("s_mov_b32 s3, 0")
        noh, nores = k.lab("L_noh"), k.lab("L_nores")
        k(f"s_cmp_lg_u32 {sW}, 0\ns_cbranch_scc1 {noh}")
        k(f"s_cmp_lg_u32 {sR}, 31\ns_cbranch_scc1 {nores}")
        k(f"v_mov_b32 v4, 0\nv_mov_b32 v5, 0\nv_mov_b32 v6, 0\nv_mov_b32 v7, 0\nv_lshlrev_b32 v8, 4, v1\ns_mov_b32 s48, {FLAGS}")
        k(f"buffer_store_dwordx4 v[4:7], v8, {SWS}, s48 offen sc1\ns_waitcnt vmcnt(0)")
        k(f"{nores}:")
        k(f"s_mul_i32 s50, {sXCC}, {sXCC}\ns_lshl_b32 s50, s50, 16\ns_lshl_b32 s51, {sXCC}, 8\ns_add_u32 s50, s50, s51\ns_add_u32 s50, s50, 1")
        k(f"v_mov_b32 v9, s50\ns_lshl_b32 s48, {sG}, 5\ns_mov_b64 exec, 1")
        k(f"buffer_atomic_add v9, off, {SDBG}, s48\ns_mov_b64 exec, -1")
        k(f"{noh}:")
        k(f"s_cmp_ge_u32 {sR}, 30\ns_cbranch_scc1 L_comp_helper")
        k(f"s_mul_i32 s48, {sW}, 14336\ns_add_u32 s48, s48, 13312\nv_lshl_add_u32 v8, v1, 4, s48")
        self.attn_setup()
        k("ds_write_b128 v8, v[236:239]")
        k("v_lshrrev_b32 v57, 1, v2\nv_xor_b32 v57, v57, v3\nv_lshlrev_b32 v57, 4, v57\nv_lshl_add_u32 v4, v2, 7, v57\nv_xor_b32 v5, 64, v4")
        self.wfrag_addr(lambda: k(f"v_xor_b32 v57, {sW}, v57"))
        k(f"v_add_u32 v6, {W1S(0)}, v57\nv_add_u32 v7, {W1S(2)}, v57")
        k(f"v_lshlrev_b32 v8, 3, v2\nv_add_u32 v8, {STAT1}, v8")
        k(f"v_and_b32 v57, 1, v2\ns_movk_i32 s48, {PB}\nv_mul_u32_u24 v57, s48, v57\nv_lshrrev_b32 v58, 1, v2\ns_movk_i32 s48, {RS}")
        k(f"v_mad_u32_u24 v57, v58, s48, v57\nv_lshl_add_u32 v57, v3, 3, v57\ns_lshl_b32 s48, {sW}, 5\ns_add_u32 s48, s48, {IMG+16}\nv_add_u32 v9, s48, v57")
        k(f"v_and_b32 v57, 1, v3\nv_lshlrev_b32 v57, 3, v57\nv_lshl_add_u32 v57, v2, 4, v57")
        k(f"v_lshrrev_b32 v58, 1, v3\ns_lshr_b32 s48, {sW}, 1\nv_cmp_eq_u32 vcc, s48, v58\nv_mov_b32 v58, {OOB:#x}\nv_cndmask_b32 v10, v58, v57, vcc")
        k(f"s_mul_i32 s73, {sR}, 5376\ns_add_u32 s73, s73, {EXPB}\ns_add_u32 s74, s73, 1792\ns_add_u32 s75, s73, 3584")
        k(f"s_cmp_lt_u32 {sJM}, 2\ns_cselect_b32 s48, 3, 0\ns_cmp_eq_u32 {sJM}, 2\ns_cselect_b32 s48, 9, s48\ns_cmp_eq_u32 s48, {sW}\ns_cselect_b32 s76, 1, 0")
        acc = lambda mat, m: (64 + 4 * (m - 1), 88 + 4 * m, 116 + 4 * m)[mat]
        tiles = [(mat, m) for m in range(7) for mat in range(3) if not (mat == 0 and m == 0)]

        def reads(n):
            i, s = n // 2, n % 2
            sl, st = i % 4, 144 + 40 * (n % 2)
            r = []
            wb, wo_ = (6, W1S(sl) - W1S(0)) if sl < 2 else (7, W1S(sl) - W1S(2))
            xr = [f"ds_read_b128 {vr(st + 4*m, 4)}, v{4+s} offset:{XS(sl) + m*2048}" for m in range(7)]
            wr = [f"ds_read_b64_tr_b16 {vr(st + 28 + 4*mat + 2*h, 2)}, v{wb} offset:{wo_ + mat*8192 + s*4096 + h*512}"
                  for mat in range(3) for h in range(2)]
            return wr + xr

        def mfmas(n):
            st = 144 + 40 * (n % 2)
            return [f"v_mfma_f32_16x16x32_bf16 {vr(acc(mat, m), 4)}, {vr(st + 28 + 4*mat, 4)}, {vr(st + 4*m, 4)}, "
                    + ("0" if n == 0 else vr(acc(mat, m), 4)) for (mat, m) in tiles]

        k("s_waitcnt lgkmcnt(0)")
        self.ts(1)
        k("s_barrier")
        self.ts(2)
        for r in reads(0):
            k(r)
        for n in range(20):
            if n == 10:
                self.hello_issue()
            if n == 16:
                self.hello_check()
            k("s_waitcnt lgkmcnt(0)")
            late = (n == 17 and self.o.get("late_last", 1))
            if late:
                for m in mfmas(n):
                    k(m)
                k("s_barrier")
                for r in reads(n + 1):
                    k(r)
                continue
            if n % 2 == 1:
                k("s_barrier")
            side = reads(n + 1) if n < 19 else [f"ds_read_b64 {vr(144 + 2*m, 2)}, v8 offset:{m*128}" for m in range(7)]
            interleave(k, mfmas(n), side)
        self.ts(12)
        k("s_waitcnt lgkmcnt(0)")
        k(f"s_mov_b32 s48, {f2u(QSCALE):#x}")
        for m in range(1, 7):
            k(f"v_mul_f32 v{172 + m - 1}, s48, v{144 + 2*m}")
        for mat in range(3):
            for r in range(4):
                k(f"v_mov_b32_dpp v{160 + 4*mat + r}, v{acc(mat, 6) + r} row_newbcast:15 row_mask:0xf bank_mask:0xf")

        def conv(mat, m):
            a, st, cs = acc(mat, m), 144 + 2 * m, 160 + 4 * mat
            o = [f"v_pk_fma_f32 {vr(a + 2*q, 2)}, {vr(cs + 2*q, 2)}, {vr(st, 2)}, {vr(a + 2*q, 2)} op_sel:[0,1,0] op_sel_hi:[1,1,1]" for q in range(2)]
            if mat == 0:
                qs = 172 + m - 1
                sel = "op_sel_hi:[1,0]" if qs % 2 == 0 else "op_sel:[0,1] op_sel_hi:[1,1]"
                o += [f"v_pk_mul_f32 {vr(a + 2*q, 2)}, {vr(a + 2*q, 2)}, {vr(qs & ~1, 2)} {sel}" for q in range(2)]
            else:
                o += [f"v_pk_mul_f32 {vr(a + 2*q, 2)}, {vr(a + 2*q, 2)}, {vr(st, 2)} op_sel_hi:[1,0]" for q in range(2)]
            o += [f"v_cvt_pk_bf16_f32 v{a}, v{a}, v{a+1}", f"v_cvt_pk_bf16_f32 v{a+1}, v{a+2}, v{a+3}"]
            return o

        def wr_img(mat, m):
            return f"ds_write_b64 v9, {vr(acc(mat, m), 2)} offset:{m*8*RS + mat*160}"

        def body(export):
            for p in range(0, 20, 2):
                c0, c1 = conv(*tiles[p]), conv(*tiles[p + 1])
                for x, y in zip(c0, c1):
                    k(x)
                    k(y)
                for (mat, m) in tiles[p:p + 2]:
                    if export:
                        k(f"buffer_store_dwordx2 {vr(acc(mat, m), 2)}, v10, {SWS}, s{73+mat} offen offset:{m*256}")
                    elif m < 6:
                        k(wr_img(mat, m))
            if export:
                for (mat, m) in tiles:
                    if m < 6:
                        k(wr_img(mat, m))
            k("s_mov_b32 s48, 0x00ff00ff\ns_mov_b32 s49, s48\ns_mov_b64 exec, s[48:49]")
            for mat in range(3):
                k(wr_img(mat, 6))
            k("s_mov_b64 exec, -1")

        lexp = k.lab("L_exp")
        k(f"s_cmp_eq_u32 s76, 1\ns_cbranch_scc1 {lexp}")
        body(False)
        k("s_branch L_attn")
        k(f"{lexp}:")
        body(True)
        self.signal(0, byte_is_wave=False)

    def wfrag_addr(self, xorj):
        k = self.k
        k("v_lshrrev_b32 v57, 3, v1\nv_and_b32 v57, 3, v57")
        xorj()
        k("v_lshlrev_b32 v57, 5, v57\nv_and_b32 v58, 3, v1\nv_lshl_add_u32 v57, v58, 3, v57")
        k("v_lshrrev_b32 v58, 2, v2\nv_lshl_add_u32 v58, v3, 3, v58\nv_lshl_add_u32 v57, v58, 7, v57")

    def attention(self):
        k = self.k
        k("L_attn:")
        k("s_waitcnt lgkmcnt(0)\ns_barrier")
        self.ts(13)
        noimp, sig = k.lab("L_noimp"), k.lab("L_asig")
        k(f"s_cmp_eq_u32 s68, 0\ns_cbranch_scc1 {sig}")
        k(f"s_cmp_eq_u32 s69, 0\ns_cbranch_scc1 {noimp}")
        k(f"v_mov_b32 v57, v61\ns_lshl_b32 s48, s70, 3\ns_add_u32 s48, s48, {FLAGS}\nv_mov_b32 v61, s48\ns_mov_b64 exec, 1")
        self.poll(0, False, want=1)
        k("v_mov_b32 v61, v57\ns_bfm_b64 exec, 52, 0")
        for mat in range(3):
            k(f"buffer_load_dwordx4 {vr(64 + 4*mat, 4)}, v250, {SWS}, 0 offen offset:{mat*1792} sc1")
        for mat in range(3):
            k(f"s_waitcnt vmcnt({2-mat})")
            k(f"ds_write2_b64 v251, {vr(64 + 4*mat, 2)}, {vr(66 + 4*mat, 2)} offset0:{mat*20} offset1:{mat*20+1}")
        k("s_mov_b64 exec, -1")
        k(f"{noimp}:")
        self.ts(14)
        Q = lambda b: 64 + 4 * b
        KK = lambda c: 76 + 4 * c
        V1, V2 = 92, 100
        Sx = lambda b: 120 + 8 * b
        P = lambda b: 144 + 4 * b
        O1 = lambda b: 156 + 4 * b
        O2 = lambda b: 168 + 4 * b
        L = lambda b: 180 + 4 * b
        M = lambda b: 196 + 2 * b
        BL = 16 * RS
        rd = []
        for c in range(4):
            a1, a2 = (240, 241) if c < 3 else (242, 243)
            rd.append(f"ds_read_b64 {vr(KK(c), 2)}, v{a1} offset:{c*BL + 160}")
            rd.append(f"ds_read_b64 {vr(KK(c)+2, 2)}, v{a2} offset:{c*BL + 160}")
            if c < 3:
                rd.append(f"ds_read_b64 {vr(Q(c), 2)}, v240 offset:{c*BL + 8*RS}")
                rd.append(f"ds_read_b64 {vr(Q(c)+2, 2)}, v241 offset:{c*BL + 8*RS}")
        for r in rd:
            k(r)
        k("v_cmp_eq_u32 vcc, 0, v3")
        k("s_waitcnt lgkmcnt(0)")
        for c in range(4):
            a = 244 if c < 3 else 245
            k(f"ds_read_b64_tr_b16 {vr(V1 + 2*c, 2)}, v{a} offset:{c*BL + 320}")
            k(f"ds_read_b64_tr_b16 {vr(V2 + 2*c, 2)}, v{a} offset:{c*BL + 352}")
        for b in range(3):
            k(f"v_cndmask_b32 v{Q(b)+2}, 0, v{Q(b)+2}, vcc\nv_cndmask_b32 v{Q(b)+3}, 0, v{Q(b)+3}, vcc")
        for b in range(3):
            k(f"v_mfma_f32_16x16x32_bf16 {vr(Sx(b), 4)}, {vr(KK(b), 4)}, {vr(Q(b), 4)}, {vr(232 if b == 0 else 224, 4)}")
            k(f"v_mfma_f32_16x16x32_bf16 {vr(Sx(b)+4, 4)}, {vr(KK(b+1), 4)}, {vr(Q(b), 4)}, v[228:231]")
        B3 = range(3)
        for b in B3:
            k(f"v_max3_f32 v{M(b)}, v{Sx(b)}, v{Sx(b)+1}, v{Sx(b)+2}")
        for b in B3:
            k(f"v_max3_f32 v{M(b)+1}, v{Sx(b)+3}, v{Sx(b)+4}, v{Sx(b)+5}")
        for b in B3:
            k(f"v_max3_f32 v{M(b)}, v{M(b)}, v{Sx(b)+6}, v{Sx(b)+7}")
        for b in B3:
            k(f"v_max_f32 v{M(b)}, v{M(b)}, v{M(b)+1}")
        for sw in ("v_permlane32_swap_b32", "v_permlane16_swap_b32"):
            for b in B3:
                k(f"v_mov_b32 v{M(b)+1}, v{M(b)}")
            for b in B3:
                k(f"{sw} v{M(b)+1}, v{M(b)}")
            for b in B3:
                k(f"v_max_f32 v{M(b)}, v{M(b)}, v{M(b)+1}")
        for b in B3:
            for q in range(4):
                k(f"v_pk_add_f32 {vr(Sx(b)+2*q, 2)}, {vr(Sx(b)+2*q, 2)}, {vr(M(b), 2)} op_sel_hi:[1,0] neg_lo:[0,1] neg_hi:[0,1]")
            for q in range(8):
                k(f"v_exp_f32 v{Sx(b)+q}, v{Sx(b)+q}")
            for q in range(4):
                k(f"v_cvt_pk_bf16_f32 v{P(b)+q}, v{Sx(b)+2*q}, v{Sx(b)+2*q+1}")
            if b == 0:
                k("s_waitcnt lgkmcnt(0)")
            k(f"v_mfma_f32_16x16x32_bf16 {vr(L(b), 4)}, v[236:239], {vr(P(b), 4)}, 0")
            k(f"v_mfma_f32_16x16x32_bf16 {vr(O1(b), 4)}, {vr(V1 + 2*b, 4)}, {vr(P(b), 4)}, 0")
            k(f"v_mfma_f32_16x16x32_bf16 {vr(O2(b), 4)}, {vr(V2 + 2*b, 4)}, {vr(P(b), 4)}, 0")
        for b in B3:
            k(f"v_rcp_f32 v{L(b)}, v{L(b)}")
            for o in (O1(b), O2(b)):
                for q in range(2):
                    k(f"v_pk_mul_f32 {vr(o+2*q, 2)}, {vr(o+2*q, 2)}, {vr(L(b), 2)} op_sel_hi:[1,0]")
            for o in (O1(b), O2(b)):
                k(f"v_cvt_pk_bf16_f32 v{o}, v{o}, v{o+1}\nv_cvt_pk_bf16_f32 v{o+1}, v{o+2}, v{o+3}")
            k(f"buffer_store_dwordx2 {vr(O1(b), 2)}, v{246 if b < 2 else 247}, {SWS}, 0 offen offset:{b*256}")
            k(f"buffer_store_dwordx2 {vr(O2(b), 2)}, v{248 if b < 2 else 249}, {SWS}, 0 offen offset:{b*256}")
        k(f"{sig}:")
        self.ts(15)
        self.signal(1)
        self.ts(16)
        k("s_cmp_eq_u32 s3, 1\ns_cbranch_scc1 L_ld_p2")

    WIN = (0, 98304)

    def gemm88(self, nst, wslot, tsbase):
        k = self.k
        acc = lambda i, a: 64 + 8 * i + 4 * a

        def reads(s):
            st = 88 + 40 * (s % 2)
            w = wslot(s)
            win = 1 if w >= self.WIN[1] else 0
            r = []
            for ks in range(2):
                for a in range(2):
                    for h in range(2):
                        r.append(f"ds_read_b64_tr_b16 {vr(st + 20*ks + 12 + 4*a + 2*h, 2)}, v{40 + 2*win + a} offset:{w - self.WIN[win] + ks*4096 + h*512}")
                for i in range(3):
                    r.append(f"ds_read_b128 {vr(st + 20*ks + 4*i, 4)}, v44 offset:{A2S(s % 4) - A2S(0) + ks*1408 + i*256}")
            return r

        def mfmas(s):
            st = 88 + 40 * (s % 2)
            return [f"v_mfma_f32_16x16x32_bf16 {vr(acc(i, a), 4)}, {vr(st + 20*ks + 12 + 4*a, 4)}, {vr(st + 20*ks + 4*i, 4)}, {vr(acc(i, a), 4)}"
                    for ks in range(2) for i in range(3) for a in range(2)]

        for s in range(nst):
            if s == nst - 1 and self.o.get("late_last", 1):
                for m in mfmas(s - 1):
                    k(m)
                k("s_barrier")
                for r in reads(s):
                    k(r)
            else:
                k("s_barrier")
                if s == 0:
                    self.ts(tsbase)
                    for r in reads(0):
                        k(r)
                else:
                    rr = reads(s)
                    k(rr[0])
                    k(rr[1])
                    interleave(k, mfmas(s - 1), rr[2:])
            k("s_waitcnt lgkmcnt(0)")
        return mfmas(nst - 1)

    def unpack_acc(self, src):
        k = self.k
        for i in range(3):
            for a in range(2):
                for q in range(2):
                    d, s = 64 + 8 * i + 4 * a + 2 * q, src + 4 * i + 2 * a + q
                    k(f"v_lshlrev_b32 v{d}, 16, v{s}\nv_and_b32 v{d+1}, 0xffff0000, v{s}")

    def comp_p2(self):
        k = self.k
        k(f"s_and_b32 s64, {sW}, 1\ns_lshr_b32 s65, {sW}, 1\ns_lshl_b32 s48, s64, 1")
        self.wfrag_addr(lambda: k("v_xor_b32 v57, s48, v57"))
        k(f"v_mov_b32 v40, v57\nv_xor_b32 v41, 32, v57\nv_add_u32 v42, {self.WIN[1]}, v40\nv_add_u32 v43, {self.WIN[1]}, v41")
        k("s_mul_i32 s66, s65, 48\nv_add_u32 v45, s66, v2")
        k(f"s_movk_i32 s48, 176\nv_mad_u32_u24 v57, v3, s48, v45\nv_lshlrev_b32 v57, 4, v57\nv_add_u32 v44, {A2S(0)}, v57")
        k("s_lshl_b32 s48, s64, 2\nv_lshrrev_b32 v57, 1, v3\nv_or_b32 v57, s48, v57\nv_and_b32 v58, 7, v2\nv_xor_b32 v57, v57, v58")
        k(f"v_lshlrev_b32 v57, 4, v57\nv_and_b32 v58, 1, v3\nv_lshl_add_u32 v57, v58, 3, v57\nv_lshl_add_u32 v46, v45, 7, v57\nv_xor_b32 v47, 32, v46")
        k(f"s_lshl_b32 s48, {sJ}, 1\ns_add_u32 s48, s48, s64\ns_mul_i32 s50, {sT}, 88")
        k(f"s_lshl_b32 s49, s48, 14\ns_lshl_b32 s51, s50, 4\ns_add_u32 s49, s49, s51\ns_add_u32 s49, s49, {HBUF}")
        k("v_lshlrev_b32 v57, 4, v45\nv_lshl_add_u32 v57, v3, 12, v57\nv_add_u32 v48, s49, v57")
        k(f"s_lshl_b32 s67, {sNP}, 1\ns_sub_u32 s51, s67, 32\nv_cmp_gt_u32 vcc, s51, v45\nv_mov_b32 v58, {OOB:#x}\nv_cndmask_b32 v49, v58, v48, vcc")
        k(f"s_lshl_b32 s49, s48, 8\ns_add_u32 s49, s49, s50\ns_lshl_b32 s49, s49, 3\ns_add_u32 s49, s49, {STAT2}")
        k("v_lshl_add_u32 v57, v45, 3, s49\nv_lshrrev_b32 v59, 2, v2\nv_cmp_eq_u32 s[48:49], v59, v3\nv_cndmask_b32 v50, v58, v57, s[48:49]\nv_cndmask_b32 v51, v58, v50, vcc")
        for q, mk in enumerate((0x22222222, 0x44444444, 0x88888888)):
            k(f"s_mov_b32 s{56+2*q}, {mk:#x}\ns_mov_b32 s{57+2*q}, {mk:#x}")
        k("s_barrier")
        self.ts(21)
        for i in range(3):
            for a in range(2):
                k(f"ds_read_b64 {vr(168 + 4*i + 2*a, 2)}, v{46+a} offset:{XRES + i*2048}")
        k("s_waitcnt lgkmcnt(0)")
        self.unpack_acc(168)
        last = self.gemm88(10, lambda s: WOP[s], 22)
        k("s_barrier")
        for m in last:
            k(m)
        self.ts(23)
        for i in range(3):
            for a in range(2):
                s = 64 + 8 * i + 4 * a
                k(f"v_cvt_pk_bf16_f32 v{240 + 4*i + 2*a}, v{s}, v{s+1}\nv_cvt_pk_bf16_f32 v{241 + 4*i + 2*a}, v{s+2}, v{s+3}")
            k(f"buffer_store_dwordx4 {vr(240 + 4*i, 4)}, v{48 if i < 2 else 49}, {SWS}, 0 offen offset:{i*256}")
            k(f"v_mfma_f32_16x16x32_bf16 {vr(88 + 8*i, 4)}, v[236:239], {vr(240 + 4*i, 4)}, 0")
            k(f"v_mfma_f32_16x16x32_bf16 {vr(92 + 8*i, 4)}, {vr(240 + 4*i, 4)}, {vr(240 + 4*i, 4)}, 0")
        for i in range(3):
            g = 92 + 8 * i
            k(f"v_cndmask_b32 v{g}, v{g}, v{g+1}, s[56:57]\nv_cndmask_b32 v{g}, v{g}, v{g+2}, s[58:59]\nv_cndmask_b32 v{89 + 8*i}, v{g}, v{g+3}, s[60:61]")
            k(f"buffer_store_dwordx2 {vr(88 + 8*i, 2)}, v{50 if i < 2 else 51}, {SWS}, 0 offen offset:{i*128}")
        self.signal(2)
        self.ts(24)

    def comp_p3(self):
        k = self.k
        k("L_comp_p3:")
        k(f"s_and_b32 s64, {sW}, 1\ns_lshr_b32 s65, {sW}, 1")
        k("v_lshrrev_b32 v57, 2, v1\ns_movk_i32 s48, 192\nv_mul_u32_u24 v57, s48, v57\nv_and_b32 v58, 3, v1\nv_lshl_add_u32 v57, v58, 3, v57\nv_and_b32 v58, 1, v3")
        for a in range(3):
            k(f"s_cmp_eq_u32 s64, 0\ns_cselect_b32 s48, {a}, {(4, 5, 3)[a]}\nv_xor_b32 v59, s48, v58\nv_lshl_add_u32 v{4+a}, v59, 5, v57\nv_add_u32 v{7+a}, 106496, v{4+a}")
        k(f"s_lshl_b32 s48, s65, 6\nv_add_u32 v57, s48, v2\nv_lshl_add_u32 v58, v3, 7, v57\nv_lshlrev_b32 v58, 4, v58\nv_add_u32 v10, {A3S(0)}, v58")
        k(f"v_lshlrev_b32 v11, 4, v57\nv_add_u32 v11, {STAT3}, v11")
        k(f"s_and_b32 s48, {sR}, 15\ns_mul_i32 s48, s48, 3\ns_lshr_b32 s49, {sR}, 4\ns_lshl_b32 s49, s49, 11")
        k("v_lshlrev_b32 v57, 4, v57\nv_lshl_add_u32 v57, v3, 12, v57\nv_add_u32 v57, s49, v57")
        k("s_lshl_b32 s49, s64, 1\ns_add_u32 s49, s49, s48\ns_lshl_b32 s49, s49, 14\nv_add_u32 v52, s49, v57")
        k("s_add_u32 s49, s48, 1\ns_lshl_b32 s49, s49, 14\ns_lshl_b32 s50, s64, 3\ns_add_u32 s49, s49, s50\nv_add_u32 v53, s49, v57")
        for r in range(4):
            k(f"v_mov_b32 v{36+r}, 0x3f803f80")
        acc = lambda i, mat, a: 64 + 24 * i + 12 * mat + 4 * a
        cs = lambda mat, a: 12 + 12 * mat + 4 * a

        def reads(n):
            i, s = n // 2, n % 2
            st = 160 + 40 * (n % 2)
            w = W3S[i % 4]
            wb, wo_ = (7, w - 106496) if w >= 106496 else (4, w)
            wr = [f"ds_read_b64_tr_b16 {vr(st + 16 + 12*mat + 4*a + 2*h, 2)}, v{wb+a} offset:{wo_ + mat*12288 + s*6144 + h*3072}"
                  for mat in range(2) for a in range(3) for h in range(2)]
            ar = [f"ds_read_b128 {vr(st + 4*m, 4)}, v10 offset:{A3S(i % 3) - A3S(0) + s*8192 + m*256}" for m in range(4)]
            return ar[:1] + wr[:6] + ar[1:] + wr[6:]

        def mfmas(n):
            st = 160 + 40 * (n % 2)
            o = []
            for mat in range(2):
                for m in range(4):
                    for a in range(3):
                        o.append(f"v_mfma_f32_16x16x32_bf16 {vr(acc(m, mat, a), 4)}, {vr(st + 16 + 12*mat + 4*a, 4)}, {vr(st + 4*m, 4)}, "
                                 + ("0" if n == 0 else vr(acc(m, mat, a), 4)))
                for a in range(3):
                    o.append(f"v_mfma_f32_16x16x32_bf16 {vr(cs(mat, a), 4)}, {vr(st + 16 + 12*mat + 4*a, 4)}, v[36:39], "
                             + ("0" if n == 0 else vr(cs(mat, a), 4)))
            return o

        k("s_barrier")
        self.ts(25)
        k("s_barrier")
        self.ts(26)
        for r in reads(0):
            k(r)
        for n in range(20):
            k("s_waitcnt lgkmcnt(0)")
            if n % 2 == 1:
                k("s_barrier")
            side = reads(n + 1) if n < 19 else [f"ds_read_b128 {vr(160 + 4*m, 4)}, v11 offset:{m*256}" for m in range(4)]
            interleave(k, mfmas(n), side)
        self.ts(36)
        k("s_waitcnt lgkmcnt(0)")
        T = 176

        def pair(m, a, t, dst):
            G, U, st = acc(m, 0, a), acc(m, 1, a), 160 + 4 * m
            o = []
            for q in range(2):
                o.append(f"v_pk_fma_f32 {vr(G+2*q, 2)}, {vr(cs(0, a)+2*q, 2)}, {vr(st, 2)}, {vr(G+2*q, 2)} op_sel_hi:[1,0,1]")
            for q in range(2):
                o.append(f"v_pk_mul_f32 {vr(t+2*q, 2)}, {vr(G+2*q, 2)}, {vr(st, 2)} op_sel:[0,1] op_sel_hi:[1,1]")
            for q in range(4):
                o.append(f"v_exp_f32 v{t+q}, v{t+q}")
            for q in range(2):
                o.append(f"v_pk_fma_f32 {vr(U+2*q, 2)}, {vr(cs(1, a)+2*q, 2)}, {vr(st, 2)}, {vr(U+2*q, 2)} op_sel_hi:[1,0,1]")
            for q in range(2):
                o.append(f"v_pk_fma_f32 {vr(t+2*q, 2)}, {vr(t+2*q, 2)}, {vr(st+2, 2)}, {vr(st+2, 2)} op_sel_hi:[1,0,0]")
            for q in range(2):
                o.append(f"v_pk_mul_f32 {vr(G+2*q, 2)}, {vr(G+2*q, 2)}, {vr(U+2*q, 2)}")
            for q in range(4):
                o.append(f"v_rcp_f32 v{t+q}, v{t+q}")
            for q in range(2):
                o.append(f"v_pk_mul_f32 {vr(G+2*q, 2)}, {vr(G+2*q, 2)}, {vr(t+2*q, 2)}")
            o.append(f"v_cvt_pk_bf16_f32 v{dst}, v{G}, v{G+1}")
            o.append(f"v_cvt_pk_bf16_f32 v{dst+1}, v{G+2}, v{G+3}")
            return o

        for m in range(4):
            dst = 200 + 8 * m
            ps = [pair(m, a, T + 4 * a, dst + 2 * a) for a in range(3)]
            for x in zip(*ps):
                for y in x:
                    k(y)
            k(f"buffer_store_dwordx4 {vr(dst, 4)}, v52, {SWS}, 0 offen offset:{m*256}")
            k(f"buffer_store_dwordx2 {vr(dst+4, 2)}, v53, {SWS}, 0 offen offset:{m*256}")
        self.ts(37)
        self.signal(3)
        self.ts(38)
        k(f"s_cmp_ge_u32 {sR}, 30\ns_cbranch_scc1 L_fin")

    def comp_p4(self):
        k = self.k
        self.unpack_acc(240)
        k("v_lshrrev_b32 v56, 2, v1\nv_and_b32 v55, 3, v1")
        k(f"s_lshl_b32 s48, {sJ}, 7\ns_lshl_b32 s49, s64, 6\ns_add_u32 s48, s48, s49\nv_lshl_add_u32 v54, v55, 4, s48")
        k(f"v_mov_b32 v60, {OOB:#x}\ns_sub_u32 s49, s67, 1\ns_movk_i32 s50, 1280")
        for i in range(3):
            k(f"s_add_u32 s48, s66, {16*i}\nv_add_u32 v57, s48, v56\nv_lshlrev_b32 v58, 1, v57\nv_subrev_u32 v59, s49, v58")
            k(f"v_cmp_gt_u32 vcc, {sNP}, v57\nv_cndmask_b32 v58, v59, v58, vcc\nv_add_u32 v58, {sROW}, v58\nv_mad_u32_u24 v58, v58, s50, v54")
            k(f"v_cmp_gt_u32 vcc, s67, v57\nv_cndmask_b32 v{46+i}, v60, v58, vcc")
        k(f"s_mul_i32 s48, {sW}, 1280\ns_add_u32 s48, s48, {OUTST}\ns_movk_i32 s49, 80")
        k("v_lshl_add_u32 v57, v3, 3, s48\nv_mad_u32_u24 v49, v2, s49, v57\nv_lshl_add_u32 v57, v55, 4, s48\nv_mad_u32_u24 v50, v56, s49, v57")
        k("s_barrier")
        self.ts(39)
        last = self.gemm88(24, lambda s: W4P[s % 13], 40)
        for m in last:
            k(m)
        self.ts(41)
        for i in range(3):
            for a in range(2):
                s = 64 + 8 * i + 4 * a
                k(f"v_cvt_pk_bf16_f32 v{s}, v{s}, v{s+1}\nv_cvt_pk_bf16_f32 v{s+1}, v{s+2}, v{s+3}")
            k(f"ds_write2_b64 v49, {vr(64 + 8*i, 2)}, {vr(68 + 8*i, 2)} offset0:0 offset1:4")
            k(f"ds_read_b128 {vr(88 + 4*i, 4)}, v50")
        for i in range(3):
            k(f"s_waitcnt lgkmcnt({2*(2-i)})")
            k(f"buffer_store_dwordx4 {vr(88 + 4*i, 4)}, v{46+i}, {SOUT}, 0 offen" + ("", " sc1", " nt", " sc0 sc1")[self.o.get("outst", 0)])
        if self.o.get("ts"):
            k("s_waitcnt vmcnt(0)")
        self.ts(42)

    def comp_helper(self):
        k = self.k
        k("L_comp_helper:")
        self.hello_issue()
        self.hello_check()
        k("s_waitcnt lgkmcnt(0)\ns_barrier")
        k("s_branch L_comp_p3")

    def build(self):
        k = self.k
        self.prologue()
        self.loader_p1()
        self.loader_rest()
        self.loader_helper()
        self.comp_helper()
        self.comp_p1()
        self.attention()
        self.comp_p2()
        self.comp_p3()
        self.comp_p4()
        k("L_fin:")
        self.ts_flush()
        k("L_end:\ns_endpgm")
        body = k.finalize()
        kn = NAME + "_kernel"
        return (HDR + "; One persistent launch: 256 workgroups (8 groups of 32), 4 MFMA waves + 4 loader waves each.\n"
                "; @launch grid=(256,1,1) block=(512,1,1) lds=163840\n"
                '.amdgcn_target "amdgcn-amd-amdhsa--gfx950"\n.text\n'
                f".globl {kn}\n.p2align 8\n.type {kn},@function\n{kn}:\n" + body +
                '.section .rodata,"a"\n.p2align 6\n'
                f".amdhsa_kernel {kn}\n  .amdhsa_next_free_vgpr 256\n  .amdhsa_next_free_sgpr 96\n  .amdhsa_accum_offset 256\n"
                "  .amdhsa_group_segment_fixed_size 0\n  .amdhsa_kernarg_size 80\n  .amdhsa_user_sgpr_count 2\n"
                "  .amdhsa_user_sgpr_kernarg_segment_ptr 1\n  .amdhsa_system_sgpr_workgroup_id_x 1\n"
                "  .amdhsa_float_denorm_mode_32 3\n.end_amdhsa_kernel\n")


if __name__ == "__main__":
    out = sys.argv[1]
    opt = {}
    for a in sys.argv[2:]:
        kk, vv = a.split("=")
        opt[kk] = int(vv)
    g = Gen(opt)
    open(out, "w").write(g.build())
    print(f"wrote {out}: {len(g.k.ins)} lines, {g.k.nops} hazard nops")
```

```python
import sys, struct
from asmfw import K, VM

NAME = "sequential_preLN__sliding_local_dilated__glu_gated_swiglu__prompt"
HDR = open(f"cdna_kernels/{NAME}.s.ref").read().split("; Override launch")[0]

GS = 2 << 20
OBUF = 0
HBUF = 786432
STAT2 = HBUF + 327680
EXPB = STAT2 + 40960
FLAGS = EXPB + 32 * 5376
OREM = FLAGS + 1024
CSB = 8 * GS
MID = 16384
TSB = 0x180000
XS = lambda s: s * 14336
W1S = lambda s: 57344 + s * 24576
MISC = 155648
STAT1 = MISC
PUREW = MISC + 896
STAT3 = MISC + 1024
OUTST = MISC + 3072
IMG, RS, PB = 53248, 496, 52 * 496 + 8
WOP = [106496 + 8192 * i for i in range(6)] + [8192 * i for i in range(4)]
XRES = 32768
A2L = [44032 + 12288 * i for i in range(5)] + [XRES] + [44032 + 12288 * i for i in range(4)]
A4S = lambda s: 49152 + (s % 6) * 11264
CSL = MISC
HPART = 49152
W3S = [106496, 131072, 0, 24576]
A3S = lambda s: 49152 + s * 16384
W4P = [8192 * i for i in range(6)] + [122880 + 8192 * i for i in range(4)]
OOB = 0x80000000
SPIN = 200000

f2u = lambda x: struct.unpack("<I", struct.pack("<f", x))[0]
LOG2E = 1.4426950408889634
QSCALE = (20 ** -0.5) * LOG2E

SX, SWQ, SWO, SW1, SW3, SW2, SOUT, SWS, SDBG = ("s[4:7]", "s[8:11]", "s[12:15]", "s[16:19]", "s[20:23]",
                                                "s[24:27]", "s[28:31]", "s[32:35]", "s[36:39]")
sW, sG, sR, sT, sJ, sJM, sLW, sSLOW = "s40", "s41", "s42", "s43", "s44", "s45", "s46", "s47"
sNP, sFLAG, sROW, sXCC = "s54", "s55", "s62", "s63"
SCS = "s[92:95]"
AUX = ("", " sc1", " nt", " sc0 sc1")


def vr(a, n=1):
    return f"v{a}" if n == 1 else f"v[{a}:{a+n-1}]"


def interleave(k, main, side, first=1, every=1):
    si = 0
    for i, m in enumerate(main):
        k(m)
        if i + 1 >= first and (i + 1 - first) % every == 0 and si < len(side):
            k(side[si])
            si += 1
    while si < len(side):
        k(side[si])
        si += 1


class Gen:
    def __init__(self, opt):
        self.o = opt
        self.k = K()
        self.nts = {"c": 0, "l": 0}

    def ts(self, n):
        if "pb" in self.o:
            if n == self.o.get("pa", -1):
                self.k("s_memrealtime s[100:101]\ns_waitcnt lgkmcnt(0)")
            if n == self.o["pb"]:
                self.k("s_memrealtime s[84:85]\ns_waitcnt lgkmcnt(0)")
        if not self.o.get("ts"):
            return
        if self.o["ts"] == 2 and n in (4, 5, 6, 7, 8, 9, 10, 28, 29, 30, 31, 32, 33, 34, 14, 20):
            return
        self.k(f"{'s_memrealtime' if self.o.get('rt') else 's_memtime'} s[84:85]\ns_waitcnt lgkmcnt(0)\nv_writelane_b32 v63, s84, {n}")

    def ts_flush(self):
        if "pb" in self.o:
            k = self.k
            k(f"s_cmp_lg_u32 {sW}, {self.o.get('pw', 0)}\ns_cbranch_scc1 L_end\ns_cmp_ge_u32 {sR}, 30\ns_cbranch_scc1 L_end")
            k("s_sub_u32 s48, s84, s100\ns_mul_i32 s48, s48, 10\ns_min_u32 s48, s48, 100000\ns_memrealtime s[100:101]\ns_waitcnt lgkmcnt(0)")
            k("L_spin:\ns_memrealtime s[84:85]\ns_waitcnt lgkmcnt(0)\ns_sub_u32 s49, s84, s100\ns_cmp_lt_u32 s49, s48\ns_cbranch_scc1 L_spin")
        if not self.o.get("ts"):
            return
        k = self.k
        k(f"s_memrealtime s[84:85]\ns_waitcnt lgkmcnt(0)\nv_writelane_b32 v63, s84, 62\nv_writelane_b32 v63, {sXCC}, 63")
        k(f"s_lshl_b32 s48, {sR}, 11\ns_lshl_b32 s49, {sW}, 8\ns_add_u32 s48, s48, s49\ns_add_u32 s48, s48, {TSB}")
        k(f"v_lshlrev_b32 v62, 2, v1\nbuffer_store_dword v63, v62, {SWS}, s48 offen")

    def capture(self, fn):
        real, out = self.k, []

        class Rec:
            def __call__(s_, t):
                out.append(t)
            lab = real.lab
        self.k = Rec()
        fn()
        self.k = real
        return out

    def signal(self, kind, byte_is_wave=True, younger=0):
        k = self.k
        fast, done = k.lab("L_sigf"), k.lab("L_sigd")
        k("v_mov_b32 v60, 1")
        if byte_is_wave:
            k(f"s_add_u32 s48, {sFLAG}, {sW}")
        else:
            k(f"s_mov_b32 s48, {sFLAG}")
        k(f"s_cmp_eq_u32 {sSLOW}, 0")
        k("s_mov_b64 exec, 1")
        k(f"s_waitcnt vmcnt({younger})")
        k(f"s_cbranch_scc1 {fast}")
        k("buffer_wbl2 sc1\ns_waitcnt vmcnt(0)")
        k(f"buffer_store_byte v60, off, {SWS}, s48 offset:{kind*256} sc1")
        k(f"s_branch {done}")
        k(f"{fast}:")
        k(f"buffer_store_byte v60, off, {SWS}, s48 offset:{kind*256}")
        k(f"{done}:")
        k("s_mov_b64 exec, -1")

    def poll(self, kind, both, want=0x01010101):
        k = self.k
        loop, out, done = k.lab("L_poll"), k.lab("L_pollo"), k.lab("L_polld")
        k(f"s_mov_b32 s48, 0\ns_mov_b32 s49, {want}")
        k(f"{loop}:")
        if both:
            k(f"buffer_load_dwordx2 v[58:59], v61, {SWS}, 0 offen offset:{kind*256} sc1")
        else:
            k(f"buffer_load_dword v58, v61, {SWS}, 0 offen offset:{kind*256} sc1")
        k(f"s_add_u32 s48, s48, 1\ns_cmp_gt_u32 s48, {SPIN}\ns_cbranch_scc1 {out}")
        k("s_waitcnt vmcnt(0)")
        if both:
            k("v_and_b32 v58, v58, v59")
        k("v_cmp_ne_u32 vcc, s49, v58")
        k(f"s_cbranch_vccnz {loop}")
        k(f"{out}:")
        k(f"s_cmp_eq_u32 {sSLOW}, 0\ns_cbranch_scc1 {done}")
        k("buffer_inv sc1\ns_waitcnt vmcnt(0)")
        k(f"{done}:")
        k("s_mov_b64 exec, -1")

    HELLO_LD = f"buffer_load_dword v43, off, {SDBG}, s83 sc1"

    def hello_check(self):
        k = self.k
        loop, ok = k.lab("L_hl"), k.lab("L_hok")
        k("s_mov_b32 s50, 0")
        k(f"{loop}:")
        k("v_readfirstlane_b32 s49, v43")
        k(f"s_add_u32 s50, s50, 1\ns_and_b32 s51, s49, 0xff\ns_cmp_eq_u32 s51, 32\ns_cbranch_scc1 {ok}")
        k(f"s_cmp_gt_u32 s50, {SPIN}\ns_cbranch_scc1 {ok}")
        k(self.HELLO_LD + "\ns_waitcnt vmcnt(0)")
        k(f"s_branch {loop}")
        k(f"{ok}:")
        k(f"s_mul_i32 s50, {sXCC}, {sXCC}\ns_lshl_b32 s50, s50, 16\ns_lshl_b32 s51, {sXCC}, 8\ns_add_u32 s50, s50, s51")
        k("s_add_u32 s50, s50, 1\ns_lshl_b32 s50, s50, 5")
        k(f"s_cmp_lg_u32 s50, s49\ns_cselect_b32 {sSLOW}, 1, 0")
        if self.o.get("force_slow"):
            k(f"s_mov_b32 {sSLOW}, 1")
        k(f"v_mov_b32 v43, {sSLOW}\nv_mov_b32 v60, {PUREW}\nds_write_b32 v60, v43")

    def read_pure(self):
        k = self.k
        k(f"v_mov_b32 v60, {PUREW}\nds_read_b32 v60, v60\ns_waitcnt lgkmcnt(0)\nv_readfirstlane_b32 {sSLOW}, v60")

    def prologue(self):
        k = self.k
        k("s_cmp_ge_u32 s2, 256\ns_cbranch_scc1 L_end")
        k("s_load_dwordx16 s[64:79], s[0:1], 0\ns_load_dwordx4 s[80:83], s[0:1], 64")
        if self.o.get("ts"):
            k("s_memrealtime s[86:87]\n" + ("s_memrealtime" if self.o.get("rt") else "s_memtime") + " s[84:85]")
        if "pb" in self.o:
            k("s_memrealtime s[100:101]\ns_memrealtime s[84:85]")
        k("v_lshrrev_b32 v1, 6, v0")
        if self.o.get("perm"):
            k(f"s_lshr_b32 {sG}, s2, 5\ns_and_b32 {sR}, s2, 31")
        else:
            k(f"s_and_b32 {sG}, s2, 7\ns_lshr_b32 {sR}, s2, 3")
        k(f"v_readfirstlane_b32 {sW}, v1")
        k("v_and_b32 v1, 63, v0\nv_and_b32 v2, 15, v0\nv_lshrrev_b32 v3, 4, v1")
        k(f"s_mul_i32 {sT}, {sR}, 26\ns_lshr_b32 {sT}, {sT}, 8\ns_mul_i32 s48, {sT}, 10\ns_sub_u32 {sJ}, {sR}, s48")
        k(f"s_cmp_ge_u32 {sR}, 30\ns_cselect_b32 {sT}, 0, {sT}")
        k(f"s_sub_u32 s48, {sJ}, 5\ns_cmp_ge_u32 {sJ}, 5\ns_cselect_b32 {sJM}, s48, {sJ}")
        k(f"s_cmp_eq_u32 {sT}, 2\ns_cselect_b32 {sNP}, 40, 44")
        k(f"s_lshl_b32 {sROW}, {sG}, 8\ns_mul_i32 s48, {sT}, 88\ns_add_u32 {sROW}, {sROW}, s48")
        k(f"s_lshl_b32 {sFLAG}, {sR}, 3\ns_add_u32 {sFLAG}, {sFLAG}, {FLAGS}")
        k(f"s_getreg_b32 {sXCC}, hwreg(HW_REG_XCC_ID)\ns_and_b32 {sXCC}, {sXCC}, 7")
        k(f"s_and_b32 {sLW}, {sW}, 3\ns_lshl_b32 {sLW}, {sLW}, 10")
        k(f"s_mov_b32 {sSLOW}, 1")
        for b, n in ((4, 2621440), (8, 2457600), (12, 819200), (16, 1966080), (20, 1966080), (24, 1966080),
                     (28, 2621440), (32, GS), (36, 256), (92, MID + 16 * 81920)):
            k(f"s_mov_b32 s{b+2}, {n}\ns_mov_b32 s{b+3}, 0x20000")
        k(f"s_lshl_b32 s61, {sG}, 21")
        k(f"s_cmp_lt_u32 {sW}, 4\ns_cbranch_scc1 L_c0")
        k("s_mov_b32 s3, 1")
        k(f"s_cmp_ge_u32 {sR}, 30\ns_cbranch_scc1 L_h0")

    def srds(self, part):
        k = self.k
        if part in (0, 2):
            k("s_waitcnt lgkmcnt(0)")
            k("s_mov_b64 s[4:5], s[64:65]\ns_mov_b64 s[8:9], s[66:67]")
            if self.o.get("ts"):
                k("v_mov_b32 v63, 0\nv_writelane_b32 v63, s84, 0\nv_writelane_b32 v63, s86, 61")
        if part in (1, 2):
            for b, p in ((12, 68), (16, 72), (20, 74), (24, 76), (28, 78), (36, 80)):
                k(f"s_mov_b64 s[{b}:{b+1}], s[{p}:{p+1}]")
            k("s_add_u32 s32, s82, s61\ns_addc_u32 s33, s83, 0")
            k(f"s_add_u32 s92, s82, {CSB}\ns_addc_u32 s93, s83, 0\ns_lshl_b32 s83, {sG}, 5")

    def hello_send(self):
        k = self.k
        k(f"s_mul_i32 s96, {sXCC}, {sXCC}\ns_lshl_b32 s96, s96, 16\ns_lshl_b32 s97, {sXCC}, 8\ns_add_u32 s96, s96, s97\ns_add_u32 s96, s96, 1")
        k(f"v_mov_b32 v43, s96\ns_mov_b64 exec, 1")
        k(f"buffer_atomic_add v43, off, {SDBG}, s83\ns_mov_b64 exec, -1")

    def comp_start(self):
        k = self.k
        k("L_h0:")
        self.srds(2)
        k("s_branch L_helper")
        k("L_c0:")
        self.srds(2)
        l2, l3, lgo = k.lab("L_w2"), k.lab("L_w3"), k.lab("L_go")
        nores = k.lab("L_nores")
        k(f"s_cmp_eq_u32 {sW}, 1\ns_cbranch_scc1 {lgo}\ns_cmp_eq_u32 {sW}, 2\ns_cbranch_scc1 {l2}\ns_cmp_eq_u32 {sW}, 3\ns_cbranch_scc1 {l3}")
        k(f"s_cmp_lt_u32 {sR}, 30\ns_cbranch_scc1 {lgo}")
        k(f"s_cmp_lg_u32 {sR}, 31\ns_cbranch_scc1 {nores}")
        k(f"v_mov_b32 v4, 0\nv_mov_b32 v5, 0\nv_mov_b32 v6, 0\nv_mov_b32 v7, 0\nv_lshlrev_b32 v8, 4, v1\ns_mov_b32 s48, {FLAGS}")
        k(f"buffer_store_dwordx4 v[4:7], v8, {SWS}, s48 offen sc1\ns_waitcnt vmcnt(0)")
        k(f"{nores}:")
        self.hello_send()
        k(f"s_branch {lgo}")
        k(f"{l2}:")
        if self.o.get("ctouch", 1):
            k("s_getpc_b64 s[48:49]\nL_pc:\ns_sub_u32 s48, s48, L_pc-L_ld0\ns_subb_u32 s49, s49, 0")
            k(f"s_mul_i32 s50, {sR}, 12*128\nv_lshl_add_u32 v4, v1, 7, s50\nv_min_u32 v4, L_end-L_ld0, v4\ns_bfm_b64 exec, 12, 0")
            k("global_load_dword v12, v4, s[48:49]")
        k(f"s_branch {lgo}")
        k(f"{l3}:")
        st = self.o.get("stouch", 1)
        if st & 1:
            k(f"s_mul_i32 s49, {sR}, 1280\ns_add_u32 s49, s49, {STAT2}\nv_lshlrev_b32 v4, 7, v1\ns_bfm_b64 exec, 10, 0")
            k(f"buffer_load_dword v12, v4, {SWS}, s49 offen")
        k(f"{lgo}:")
        k("s_mov_b64 exec, -1\ns_mov_b32 s3, 0")
        k(f"s_cmp_ge_u32 {sR}, 30\ns_cbranch_scc1 L_helper")

    def attn_setup(self):
        k = self.k
        ZP = IMG + 480
        k(f"s_lshr_b32 s65, {sW}, 2\ns_xor_b32 s64, {sW}, s65\ns_and_b32 s64, s64, 3")
        k(f"s_mul_i32 s66, {sJM}, 3\ns_add_u32 s66, s66, s64")
        k(f"s_mul_i32 s67, s66, 40\ns_lshl_b32 s48, {sJM}, 7\ns_sub_u32 s67, s67, s48\ns_add_u32 s67, s67, {IMG+16}")
        k(f"s_cmp_ge_u32 {sJ}, 5\ns_cselect_b32 s48, 16, 0\ns_add_u32 s66, s66, s48")
        k(f"s_mul_i32 s48, s65, {PB}\ns_add_u32 s67, s67, s48")
        k(f"s_cmp_lt_u32 {sJM}, 2\ns_cselect_b32 s48, 3, 0\ns_cmp_eq_u32 {sJM}, 2\ns_cselect_b32 s48, 9, s48\ns_cmp_lg_u32 s64, s48\ns_cselect_b32 s68, 1, 0")
        k(f"v_lshlrev_b32 v60, 2, v3\nv_and_b32 v59, 40, v1\nv_cmp_eq_u32 vcc, 8, v59\nv_add_u32 v59, 16, v60\nv_cndmask_b32 v60, v60, v59, vcc")
        k(f"v_sub_u32 v59, v2, v60\nv_mov_b32 v58, {f2u(-1e30):#x}")
        k(f"s_or_b32 s48, {sG}, {sT}\ns_cmp_eq_u32 s48, 0\ns_cselect_b32 s48, 8, 0")
        for r in range(4):
            k(f"v_add_u32 v57, {8-r}, v59\nv_cmp_gt_u32 vcc, 8, v57\nv_cndmask_b32 v{224+r}, v58, 0, vcc")
            k(f"v_add_u32 v57, {r}, v60\nv_cmp_gt_u32 vcc, s48, v57\nv_cndmask_b32 v{228+r}, v{224+r}, v58, vcc")
            k(f"v_mov_b32 v{236+r}, 0x3f803f80")
        k(f"s_movk_i32 s48, {RS}")
        k("v_mul_u32_u24 v57, s48, v2\nv_add_u32 v57, s67, v57\nv_lshl_add_u32 v240, v3, 3, v57\nv_add_u32 v241, 32, v57")
        k("v_add_u32 v56, 16, v2\nv_cmp_gt_u32 vcc, 8, v2\nv_cndmask_b32 v56, v2, v56, vcc")
        k("v_mul_u32_u24 v57, s48, v56\nv_add_u32 v57, s67, v57\nv_lshl_add_u32 v242, v3, 3, v57\nv_add_u32 v243, 32, v57")
        k("v_min_u32 v56, 19, v56\nv_mul_u32_u24 v57, s48, v56\nv_add_u32 v57, s67, v57\nv_lshl_add_u32 v244, v3, 3, v57\nv_add_u32 v245, 32, v57")
        k(f"v_mov_b32 v58, {ZP - 8*RS}\nv_cndmask_b32 v232, v58, v240, vcc\nv_cndmask_b32_e64 v234, v240, v58, vcc")
        k("v_cmp_gt_u32 vcc, 8, v1\nv_cndmask_b32 v233, v58, v241, vcc\nv_lshrrev_b32 v57, 3, v1\nv_cmp_eq_u32 vcc, 1, v57\nv_cndmask_b32 v235, v58, v241, vcc")
        k("v_lshrrev_b32 v57, 2, v1\nv_and_b32 v56, 3, v1")
        k("v_mul_u32_u24 v59, s48, v57\nv_add_u32 v59, s67, v59\nv_lshl_add_u32 v252, v56, 3, v59")
        k("v_min_u32 v57, 3, v57\nv_mul_u32_u24 v57, s48, v57\nv_add_u32 v57, s67, v57\nv_lshl_add_u32 v253, v56, 3, v57")
        k(f"v_mov_b32 v58, {ZP - 352}")
        for b in range(3):
            k(f"v_cmp_eq_u32 vcc, {b}, v56\nv_cndmask_b32 v{249+b}, v58, v59, vcc")
        k("v_cndmask_b32_e64 v254, v58, v57, vcc")
        k(f"s_lshl_b32 s49, s65, 3\ns_add_u32 s49, s49, {STAT1 + 128}\nv_lshl_add_u32 v255, v2, 4, s49")
        k(f"s_mul_i32 s49, {sT}, 88\ns_mul_i32 s50, {sNP}, s65\ns_add_u32 s49, s49, s50\ns_lshl_b32 s49, s49, 4")
        k("s_lshl_b32 s50, s66, 13\ns_add_u32 s49, s49, s50")
        k("v_lshrrev_b32 v57, 1, v3\nv_lshlrev_b32 v57, 12, v57\nv_lshl_add_u32 v57, v2, 4, v57\nv_add_u32 v57, s49, v57")
        k(f"v_and_b32 v56, 1, v3\nv_lshl_add_u32 v246, v56, 8, v57\nv_mov_b32 v58, {OOB:#x}")
        k(f"s_sub_u32 s50, {sNP}, 32\nv_lshl_add_u32 v56, v56, 4, v2\nv_cmp_gt_u32 vcc, s50, v56\nv_cndmask_b32 v247, v58, v57, vcc")
        k(f"s_lshl_b32 s49, {sT}, 1\ns_add_u32 s49, s49, s65\ns_lshl_b32 s49, s49, 5\ns_add_u32 s49, s49, s66\ns_mul_i32 s49, s49, 384\ns_add_u32 s49, s49, {OREM}")
        k("v_lshl_add_u32 v57, v1, 3, s49\nv_cmp_gt_u32 vcc, 48, v1\nv_cndmask_b32 v248, v58, v57, vcc")
        for e in range(12):
            k(f"v_mov_b32 v{26+e}, 0")

    def import_setup(self):
        k = self.k
        k(f"s_lshr_b32 s48, s60, 1\ns_and_b32 s49, s60, 1\ns_sub_u32 s50, {sJM}, s48\ns_sub_u32 s50, s50, 1\ns_cmp_lt_u32 s50, 2\ns_cselect_b32 s69, 1, 0")
        k(f"s_lshl_b32 s50, s48, 1\ns_add_u32 s50, s50, {sR}\ns_sub_u32 s50, s50, 1\ns_mul_i32 s50, s50, 5120\ns_add_u32 s50, s50, {EXPB}")
        k("v_lshl_add_u32 v57, v1, 1, s49\nv_lshl_add_u32 v38, v57, 4, s50")
        k("v_max_u32 v57, 16, v57\nv_subrev_u32 v57, 16, v57\nv_lshrrev_b32 v58, 5, v57\nv_lshlrev_b32 v58, 8, v58\nv_and_b32 v59, 15, v57")
        k("v_lshl_add_u32 v58, v59, 4, v58\nv_lshrrev_b32 v59, 1, v57\nv_and_b32 v59, 8, v59\ns_add_u32 s50, s50, 3584\nv_add3_u32 v40, v58, v59, s50")
        k(f"s_mul_i32 s50, s49, {PB}\ns_mul_i32 s51, s48, 144\ns_add_u32 s50, s50, s51\ns_add_u32 s50, s50, {IMG}\ns_movk_i32 s51, {RS}")
        k("v_mul_u32_u24 v39, s51, v1\nv_add_u32 v39, s50, v39")
        k(f"s_movk_i32 s51, {16*RS}\nv_mul_u32_u24 v41, s51, v1\nv_add_u32 v41, {IMG + 480}, v41")

    def do_import(self):
        k = self.k
        loop, out, skip = k.lab("L_imp"), k.lab("L_impo"), k.lab("L_imps")
        k("s_bfm_b64 exec, 4, 0\nds_write_b64 v41, v[26:27]\ns_mov_b64 exec, -1")
        k(f"s_cmp_eq_u32 s69, 0\ns_cbranch_scc1 {skip}")
        k("s_bfm_b64 exec, 52, 0\ns_mov_b32 s49, 0")
        k(f"{loop}:")
        for gg in range(2):
            k(f"buffer_load_dwordx4 {vr(64 + 4*gg, 4)}, v38, {SWS}, 0 offen offset:{gg*1792} sc1")
        for gg in range(2):
            k(f"buffer_load_dwordx2 {vr(72 + 2*gg, 2)}, v40, {SWS}, 0 offen offset:{gg*768} sc1")
        k(f"s_add_u32 s49, s49, 1\ns_cmp_gt_u32 s49, {SPIN}\ns_waitcnt vmcnt(3)")
        k("v_max3_u32 v76, v64, v65, v66\ns_waitcnt vmcnt(2)\nv_max3_u32 v77, v67, v68, v69\nv_max3_u32 v76, v76, v70, v71\ns_waitcnt vmcnt(1)\nv_max3_u32 v77, v77, v72, v73")
        k("s_waitcnt vmcnt(0)\nv_max3_u32 v76, v76, v74, v75\nv_max_u32 v76, v76, v77")
        k(f"s_cbranch_scc1 {out}\nv_cmp_eq_u32 vcc, -1, v76\ns_cbranch_vccnz {loop}")
        k(f"{out}:")
        k("ds_write2_b64 v39, v[72:73], v[74:75] offset0:0 offset1:1")
        k("ds_write2_b64 v39, v[64:65], v[68:69] offset0:20 offset1:21")
        k("ds_write2_b64 v39, v[66:67], v[70:71] offset0:40 offset1:41")
        k("s_mov_b64 exec, -1")
        k(f"{skip}:")

    def emit(self, vm, items, fill=()):
        k = self.k
        fill = list(fill)
        n = len(items)
        for i, (tag, pre, ld, post) in enumerate(items):
            k(pre)
            if self.o.get("nold") and " lds" in ld:
                ld = "s_nop 0"
            vm.issue(tag, ld)
            k(post)
            take = -(-len(fill) // (n - i))
            for f in fill[:take]:
                k(f)
            fill = fill[take:]
        for f in fill:
            k(f)

    def it_p1(self, i):
        s, tag, it = i % 4, ("p1", i), []
        xa = AUX[self.o.get("xaux0", 2) if (i == 0 and self.o.get("rot", 1) in (1, 2, 3)) else 0]
        pre = (f"s_bfe_u32 s59, s89, {(3 << 16) | (3 * i):#x}\ns_add_u32 s59, s59, s88\ns_add_u32 s59, s59, {i}\n"
               "s_mul_i32 s56, s59, 26\ns_lshr_b32 s56, s56, 8\ns_mul_i32 s56, s56, 10\ns_sub_u32 s59, s59, s56\n"
               "s_lshl_b32 s56, s59, 7\ns_mul_i32 s57, s59, 245760\ns_add_u32 s58, s57, 122880\n")
        for hf in range(2):
            for mat in range(3):
                it.append((tag, pre + f"s_add_u32 m0, {sLW}, {W1S(s) + mat*8192 + hf*4096 - mat*1280}",
                           f"buffer_load_dwordx4 v10, {SWQ}, s{57+hf} offen offset:{mat*1280} lds", ""))
                pre = ""
            if hf == 0:
                for q in range(3):
                    it.append((tag, f"s_add_u32 m0, {sLW}, {XS(s) + q*4096}", f"buffer_load_dwordx4 v{6+q}, {SX}, s56 offen{xa} lds", ""))
                it.append((tag, f"s_mov_b32 m0, {XS(s) + 12288}\ns_mov_b64 exec, s[52:53]",
                           f"buffer_load_dwordx4 v9, {SX}, s56 offen{xa} lds", "s_mov_b64 exec, -1"))
        return it

    def it_wo(self, p):
        it = []
        for hf in range(2):
            ks = 2 * p + hf
            if ks < 16:
                so, v = f"s_add_u32 s56, s73, {40*ks*1280}", 12
            else:
                so, v = f"s_add_u32 s56, s74, {160*(ks-16)*1280}", 55
            it.append((("wo", p), so + f"\ns_add_u32 m0, {sLW}, {WOP[p] + hf*4096}", f"buffer_load_dwordx4 v{v}, {SWO}, s56 offen lds", ""))
        return it

    def ld_lane_basics(self):
        k = self.k
        k(f"s_and_b32 s60, {sW}, 3")
        k("v_lshrrev_b32 v4, 3, v1\nv_and_b32 v5, 7, v1")
        k("s_and_b32 s48, s60, 1\ns_lshl_b32 s48, s48, 2")
        k(f"v_and_b32 v57, 1, v3\nv_lshlrev_b32 v57, 1, v57\nv_or_b32 v57, s48, v57\nv_xor_b32 v42, v57, v5")
        k(f"s_lshl_b32 s49, {sJ}, 7\nv_lshl_add_u32 v13, v42, 4, s49")

    def ld_setup_w(self):
        k = self.k
        k("v_lshrrev_b32 v57, 5, v1\nv_and_b32 v56, 3, v4\ns_movk_i32 s49, 1280")
        k("v_mad_u32_u24 v12, v4, s49, v13")
        k("s_movk_i32 s48, 80\nv_mad_u32_u24 v58, v57, s48, v56\nv_mad_u32_u24 v55, v58, s49, v13")
        k("v_lshl_add_u32 v58, v57, 4, v56\nv_mad_u32_u24 v14, v58, s49, v13")
        k("s_lshr_b32 s48, s60, 1\ns_mul_i32 s73, s48, 25600\ns_and_b32 s48, s60, 1\ns_mul_i32 s48, s48, 10240\ns_add_u32 s73, s73, s48")
        k("s_mul_i32 s74, s60, 25600\ns_add_u32 s74, s74, 20480")
        k("s_mul_i32 s80, s60, 5120\ns_mul_i32 s81, s60, 10240")
        k("s_mul_i32 s75, s60, 2816\ns_bfm_b64 s[76:77], 48, 0")

    def ld_setup_rest(self):
        k = self.k
        k(f"s_mul_i32 s48, {sT}, 88\ns_lshl_b32 s49, s60, 8\ns_add_u32 s48, s48, s49\ns_lshl_b32 s48, s48, 4")
        k("v_lshl_add_u32 v15, v1, 4, s48")
        k(f"v_add_u32 v16, 1024, v15\nv_add_u32 v57, {16384 - 88*16}, v16\nv_cmp_gt_u32 vcc, 24, v1\nv_cndmask_b32 v16, v57, v16, vcc")
        k(f"v_add_u32 v17, {2048 + 16384 - 88*16}, v15")
        k(f"s_lshl_b32 s48, {sT}, 1\ns_lshr_b32 s49, s60, 1\ns_add_u32 s48, s48, s49\ns_mul_i32 s48, s48, 12288\ns_and_b32 s49, s60, 1\ns_mul_i32 s49, s49, 3072")
        k(f"s_add_u32 s48, s48, s49\ns_add_u32 s48, s48, {OREM}\nv_lshl_add_u32 v54, v1, 4, s48")
        k(f"s_and_b32 s48, {sR}, 15\ns_and_b32 s49, s48, 1\ns_mul_i32 s50, s48, 192\ns_lshl_b32 s51, s49, 6\ns_add_u32 s51, s51, s50")
        k("v_lshrrev_b32 v57, 5, v1\nv_and_b32 v56, 3, v4\nv_lshl_add_u32 v58, v57, 4, v56\nv_mul_u32_u24 v59, 3072, v58")
        k("v_lshl_add_u32 v45, v42, 4, v59\nv_add_u32 v45, s51, v45")
        k("s_xor_b32 s49, s49, 1\ns_lshl_b32 s49, s49, 7\ns_add_u32 s50, s50, s49\nv_and_b32 v57, 3, v42\nv_lshl_add_u32 v47, v57, 4, v59\nv_add_u32 v47, s50, v47")
        k(f"s_mul_i32 s48, s48, 81920\ns_add_u32 s48, s48, {MID}\nv_lshlrev_b32 v58, 7, v58\nv_lshl_add_u32 v46, v42, 4, v58\nv_add_u32 v46, s48, v46")
        k("s_mul_i32 s70, s60, 12288\ns_lshl_b32 s71, s60, 9")
        k("s_and_b32 s48, s60, 1\ns_lshl_b32 s48, s48, 2\ns_lshl_b32 s86, 0x0f0f0f0f, s48\ns_mov_b32 s87, s86")
        k("s_mul_i32 s78, s60, 3072")
        k(f"s_lshr_b32 s48, {sR}, 4\ns_lshl_b32 s49, s48, 11\ns_lshl_b32 s50, s60, 12\ns_add_u32 s49, s49, s50\ns_add_u32 s49, s49, {HBUF}")
        k("v_lshl_add_u32 v48, v1, 4, s49")
        k("s_lshl_b32 s79, s60, 11")
        k(f"s_lshl_b32 s49, s48, 10\ns_lshl_b32 s50, s60, 8\ns_add_u32 s49, s49, s50\ns_add_u32 s49, s49, {STAT2}")
        k("v_and_b32 v57, 31, v1\nv_lshrrev_b32 v58, 5, v1\nv_lshlrev_b32 v58, 11, v58\nv_lshl_add_u32 v49, v57, 3, v58\nv_add_u32 v49, s49, v49")
        k(f"s_lshl_b32 s49, s60, 9\ns_add_u32 s49, s49, {STAT3}\nv_lshl_add_u32 v50, v57, 4, s49")
        k(f"s_and_b32 s48, {sR}, 15\ns_mul_i32 s48, s48, 384\nv_lshl_add_u32 v11, v1, 4, s48\nv_add_u32 v57, {6144 - 384}, v11\nv_cmp_gt_u32 vcc, 24, v1\nv_cndmask_b32 v11, v57, v11, vcc")
        k(f"v_lshlrev_b32 v61, 3, v1\nv_add_u32 v61, {FLAGS}, v61")

    def loader_p1(self):
        k = self.k
        vm = VM(k)
        k("L_ld0:")
        if self.o.get("prio", 0):
            k("s_setprio 3")
        self.ld_lane_basics()
        k(f"s_lshl_b32 s49, s60, 3\ns_add_u32 s56, {sROW}, s49\ns_sub_u32 s56, s56, 16")
        k("v_add_u32 v57, s56, v4\ns_movk_i32 s57, 1280\nv_mul_lo_u32 v57, v57, s57")
        k("v_or_b32 v58, s48, v3\nv_xor_b32 v58, v58, v5\nv_lshl_add_u32 v6, v58, 4, v57")
        k(f"v_add_u32 v7, {32*1280}, v6\nv_add_u32 v8, {64*1280}, v6")
        k(f"s_add_u32 s56, {sROW}, 80\nv_add_u32 v57, s56, v4\nv_mul_lo_u32 v57, v57, s57")
        k("v_xor_b32 v58, v3, v5\nv_lshl_add_u32 v9, v58, 4, v57")
        k("v_add_u32 v57, s49, v4\ns_movk_i32 s57, 3840\nv_mad_u32_u24 v10, v57, s57, v13")
        k("s_lshl_b32 s49, s60, 4\ns_bfm_b64 s[52:53], 16, s49")
        rot = self.o.get("rot", 1)
        k(f"s_mul_i32 s88, {sG}, 10\ns_lshr_b32 s88, s88, 3\ns_add_u32 s88, s88, 8")
        if rot in (1, 2, 3):
            k(f"s_add_u32 s88, s88, {sJ}")
        wins = ([[0, 1, 2], [3, 4, 5], [6, 7, 8], [9]], [[0, 1, 2], [3], [4, 5, 6], [7, 8, 9]], [[0, 1, 2], [3], [4], [5, 6, 7], [8, 9]])
        if rot == 3:
            wins = ([[0, 1, 2]] + [[q] for q in range(3, 10)],) * 3
        k(f"s_mov_b32 s89, {sum(2 << (3*i) for i in range(10)):#x}")
        if rot in (2, 3):
            k(f"s_mul_i32 s56, {sJ}, 22\ns_lshr_b32 s56, s56, 6\ns_mul_i32 s56, s56, 3\ns_sub_u32 s56, {sJ}, s56\ns_mul_i32 s56, s56, 3\ns_add_u32 s56, s56, {sT}")
            for ph in range(3):
                for t in range(1, 3):
                    order = [w[(t + q) % len(w)] for w in wins[ph] for q in range(len(w))]
                    word = sum((order[i] - i + 2) << (3 * i) for i in range(10))
                    k(f"s_cmp_eq_u32 s56, {3*ph + t}\ns_cselect_b32 s89, {word:#x}, s89")
        k(f"s_mul_i32 s49, s60, 26\ns_add_u32 s49, s49, {sROW}\ns_sub_u32 s49, s49, 16\nv_add_u32 v57, s49, v1\ns_movk_i32 s57, 1280\nv_mul_lo_u32 v22, v57, s57\ns_lshl_b32 s49, {sJ}, 7")
        if rot == 4:
            k(f"s_sub_u32 s56, s88, 8\ns_mul_i32 s56, s56, 1920\ns_lshl_b32 s57, {sR}, 2\ns_add_u32 s57, s57, s60\ns_lshl_b32 s58, s57, 4\ns_add_u32 s56, s56, s58")
            k(f"s_and_b32 s58, {sG}, 3\ns_mul_i32 s58, s58, 120\ns_add_u32 s57, s57, s58\ns_lshl_b32 s57, s57, 2\ns_lshr_b32 s58, {sG}, 2\ns_mul_i32 s58, s58, 9600\ns_add_u32 s57, s57, s58\ns_add_u32 s57, s57, {4*1920 - 16}")
            k("v_add_u32 v57, s56, v1\nv_add_u32 v58, s57, v1\nv_cmp_gt_u32 vcc, 16, v1\nv_cndmask_b32 v57, v58, v57, vcc\nv_lshlrev_b32 v21, 7, v57")
        self.srds(0)
        self.ts(50)
        if self.o.get("lat0"):
            k("s_mov_b64 exec, 1")
            for n_, (v_, srd_, off_) in enumerate(((7, SX, 0), (10, SWQ, 0), (7, SX, 256), (10, SWQ, 1280), (8, SX, 512))):
                k(f"buffer_load_dword v23, v{v_}, {srd_}, 0 offen offset:{off_}\ns_waitcnt vmcnt(0)")
                self.ts(51 + n_)
            k("s_mov_b64 exec, -1")
        xt = [("xt", "s_bfm_b64 exec, 26, 0", f"buffer_load_dword v23, v22, {SX}, s49 offen" + AUX[self.o.get("xtaux", 2)], "s_mov_b64 exec, -1")]
        xtouch = self.o.get("xtouch", 0 if rot else 2)
        if rot == 4:
            self.emit(vm, [("xt", "s_bfm_b64 exec, 20, 0", f"buffer_load_dword v23, v21, {SWQ}, 0 offen", "")] + xt + self.it_p1(0)[:self.o.get("pre0", 2)])
        else:
            self.emit(vm, (xt if xtouch == 1 else []) + self.it_p1(0) + (xt if xtouch == 2 else []))
        self.ts(1)
        self.srds(1)
        k(f"s_mul_i32 s48, {sR}, 5120\ns_mul_i32 s49, s60, 1280\ns_add_u32 s48, s48, s49\ns_add_u32 s48, s48, {EXPB}\nv_lshl_add_u32 v25, v1, 4, s48")
        nsp = self.o.get("sp1", 32)
        k(f"s_mul_i32 s48, {sG}, 30\ns_add_u32 s48, s48, {sR}\ns_lshl_b32 s48, s48, 1\ns_and_b32 s49, s60, 1\ns_add_u32 s48, s48, s49\ns_lshl_b32 s48, s48, 7")
        k(f"s_add_u32 s48, s48, {1966080 - (nsp//2 - nsp//4)*61440}\ns_cmp_lt_u32 s60, 2\ns_cselect_b32 s98, s16, s20\ns_cselect_b32 s99, s17, s21\ns_add_u32 s98, s98, s48\ns_addc_u32 s99, s99, 0")
        spf = [f"s_load_dword s91, s[98:99], {n*61440}\ns_load_dword s91, s[98:99], {n*61440 + 64}" for n in range(-(nsp // 4), nsp // 2 - nsp // 4)]
        k("v_mov_b32 v92, -1\nv_mov_b32 v93, -1\nv_mov_b32 v94, -1\nv_mov_b32 v95, -1")
        sn = [("sn", "", f"buffer_store_dwordx4 v[92:95], v25, {SWS}, 0 offen sc1", ""),
              ("sn", "s_bfm_b64 exec, 16, 0", f"buffer_store_dwordx4 v[92:95], v25, {SWS}, 0 offen offset:1024 sc1", "s_mov_b64 exec, -1")]

        def late_setup():
            k = self.k
            self.ld_setup_w()
            for i in range(3):
                k(f"s_mul_i32 s48, s60, 22\ns_add_u32 s48, s48, {8*i}\nv_add_u32 v57, s48, v4")
                k(f"v_lshlrev_b32 v58, 1, v57\ns_lshl_b32 s49, {sNP}, 1\ns_sub_u32 s49, s49, 1\nv_subrev_u32 v59, s49, v58")
                k(f"v_cmp_gt_u32 vcc, {sNP}, v57\nv_cndmask_b32 v58, v59, v58, vcc\nv_add_u32 v58, {sROW}, v58")
                k(f"v_and_b32 v59, 7, v57\nv_xor_b32 v59, v59, v5\ns_lshl_b32 s49, {sJ}, 7\nv_lshl_add_u32 v59, v59, 4, s49")
                k(f"s_movk_i32 s49, 1280\nv_mad_u32_u24 v{51+i}, v58, s49, v59")
            self.attn_setup()
            self.import_setup()
            self.ld_setup_rest()
        setup = self.capture(late_setup)
        npre = self.o.get("setup0", 200)
        for g in setup[:npre]:
            k(g)
        setup = setup[npre:]
        la = self.o.get("la1", 1)
        la0 = self.o.get("la10", 10)
        if rot == 4:
            self.emit(vm, self.it_p1(0)[self.o.get("pre0", 2):])
        pend = []
        for i in range(1, la + 1):
            pend += self.it_p1(i)
        self.emit(vm, pend[:la0])
        pend = pend[la0:]
        woa, wob = self.o.get("woa", 4), self.o.get("wob", 7)
        for i in range(10):
            vm.wait(*([("p1", i)] + (["sn"] if i == 2 else [])))
            k("s_barrier")
            if i == 0 or not nsp:
                self.ts(2 + i)
            items = pend + (self.it_p1(i + la + 1) if i + la + 1 <= 9 else [])
            pend = []
            if i == 0:
                items = sn + items
            if i == 2:
                sk = k.lab("L_hs")
                k(f"s_cmp_lg_u32 {sW}, 4\ns_cbranch_scc1 {sk}")
                self.hello_send()
                k(f"{sk}:")
            if i == 7:
                items = [("hl", "", self.HELLO_LD, "")] + items
            if i == 8:
                for p in range(woa):
                    items += self.it_wo(p)
            take = -(-len(setup) // (8 - i)) if i < 8 else 0
            mid, setup = setup[:take], setup[take:]
            take = -(-len(spf) // (8 - i)) if i < 8 else 0
            sp, spf = spf[:take], spf[take:]
            for q, x in enumerate(sp):
                mid.insert(q * (len(mid) + 1) // len(sp), x)
            self.emit(vm, items, mid)
        assert not setup
        vm.wait("hl")
        self.hello_check()
        for p in range(woa, wob):
            self.emit(vm, self.it_wo(p))
        k("s_waitcnt lgkmcnt(0)\ns_barrier")
        self.ts(12)
        self.do_import()
        self.ts(17)
        k("s_setprio 0")
        k("s_branch L_attn")

    def ld_attn_mid(self):
        k = self.k
        vm = VM(k)
        for i in range(3):
            k(f"s_add_u32 m0, s75, {XRES + i*1024}")
            if i == 2:
                k("s_mov_b64 exec, s[76:77]")
            vm.issue("xres", f"buffer_load_dwordx4 v{51+i}, {SX}, 0 offen lds")
        k("s_mov_b64 exec, -1")
        for p in range(self.o.get("wob", 7), 10):
            self.emit(vm, self.it_wo(p))
        return len(vm.tags)

    def it_act88(self, tag, s, base):
        it = []
        for i in range(3):
            pre = (f"s_mov_b32 s56, {OBUF + s*32768}\n" if i == 0 else "") + f"s_add_u32 m0, s75, {base + i*1024}"
            if i == 2:
                pre += "\ns_mov_b64 exec, s[76:77]"
            it.append((tag, pre, f"buffer_load_dwordx4 v{15+i}, {SWS}, s56 offen sc1 lds", "s_mov_b64 exec, -1" if i == 2 else ""))
        return it

    def it_a2(self, s):
        if s < 8:
            return self.it_act88(("a2", s), s, A2L[s])
        return [(("a2", s), (f"s_mov_b32 s56, {(s-8)*6144}\ns_add_u32 m0, s78, {A2L[s]}" if i == 0 else ""),
                 f"buffer_load_dwordx4 v54, {SWS}, s56 offen offset:{i*1024} sc1 lds", "") for i in range(3)]

    def it_w3(self, i):
        it, tag = [], ("w3", i)
        for hf in range(2):
            base = W3S[i % 4] + hf * 4096
            it.append((tag, f"s_add_u32 s57, s70, {(64*i + 32*hf)*3072}\ns_add_u32 m0, {sLW}, {base}", f"buffer_load_dwordx4 v45, {SW1}, s57 offen lds", ""))
            it.append((tag, f"s_add_u32 m0, {sLW}, {base + 8192}", f"buffer_load_dwordx4 v45, {SW3}, s57 offen lds", ""))
            if i >= self.o.get("mid0", 4):
                it.append((tag, f"s_add_u32 s58, s71, {(64*i + 32*hf)*128}\ns_add_u32 m0, {sLW}, {base + 16384}",
                           f"buffer_load_dwordx4 v46, {SCS}, s58 offen sc1 lds", ""))
            else:
                it.append((tag, f"s_add_u32 m0, {sLW}, {base + 16384}\ns_mov_b64 exec, s[86:87]", f"buffer_load_dwordx4 v47, {SW1}, s57 offen lds", ""))
                it.append((tag, "s_not_b64 exec, s[86:87]", f"buffer_load_dwordx4 v47, {SW3}, s57 offen lds", "s_mov_b64 exec, -1"))
        return it

    def it_a3(self, i):
        it = []
        for ksub in range(2):
            for q in range(2):
                pre = f"s_mov_b32 s56, {(2*i + ksub)*16384}\ns_add_u32 m0, s79, {A3S(i % 3) + ksub*8192}" if q == 0 else ""
                it.append((("a3", i), pre, f"buffer_load_dwordx4 v48, {SWS}, s56 offen offset:{q*1024} sc1 lds", ""))
        return it

    def it_w4(self, p):
        it = []
        for hf in range(2):
            ks = 2 * p + hf
            sb, v = ("s81", 12) if ks % 6 in (2, 3) else ("s80", 14)
            it.append((("w4", p), f"s_add_u32 s57, {sb}, {32*ks*1280}\ns_add_u32 m0, {sLW}, {W4P[p % 10] + hf*4096}",
                       f"buffer_load_dwordx4 v{v}, {SW2}, s57 offen lds", ""))
        return it

    def ld_poll(self, kind, both, maskcode):
        k = self.k
        skip = k.lab("L_np")
        k(f"s_cmp_lg_u32 {sW}, 4\ns_cbranch_scc1 {skip}")
        k(maskcode)
        self.poll(kind, both)
        k(f"{skip}:")
        k("s_barrier")

    def w2_pref_setup(self):
        self.k(f"s_lshl_b32 s48, s2, 2\ns_add_u32 s48, s48, s60\ns_mul_i32 s48, s48, 1920\ns_add_u32 s98, s24, s48\ns_addc_u32 s99, s25, 0")

    def w2_pref(self, a, b):
        if self.o.get("w2s", 1):
            for n in range(a, min(b, 30)):
                self.k(f"s_load_dword s96, s[98:99], {64*n}")

    def tsl(self, n):
        if not self.o.get("w2s", 1) or n >= 36:
            self.ts(n)

    def loader_rest(self):
        k = self.k
        vm = VM(k)
        E = lambda items, fill=(): self.emit(vm, items, fill)
        k("L_ld_p2:")
        if self.o.get("prio", 0):
            k("s_setprio 3")
        self.w2_pref_setup()
        self.w2_pref(0, 2)
        k("s_waitcnt vmcnt(0)")
        self.ld_poll(1, True, f"s_mul_i32 s48, {sT}, 10\ns_bfm_b64 exec, 10, s48")
        self.tsl(21)
        la = self.o.get("la2", 3)
        npre = self.o.get("w3pre", 2)
        w3at = self.o.get("w3at", 8)
        nxt = 0
        for i in range(10):
            while nxt <= min(9, i + la) and nxt <= (4 if i == 0 else max(5, i + 3)):
                E(self.it_a2(nxt))
                nxt += 1
            if i == w3at and npre >= 1:
                E(self.it_w3(0))
            if i % 2:
                self.w2_pref(2 + i // 2, 3 + i // 2)
            vm.wait(("a2", i))
            k("s_barrier")
            if i in (0, 9):
                self.tsl(22 + (i == 9))
        k("s_barrier")
        if npre >= 2:
            E(self.it_w3(1))
        self.w2_pref(7, 10)
        k("L_ld_p3:")
        for i in range(2, npre):
            E(self.it_w3(i))
        self.tsl(24)
        self.ld_poll(2, False, f"s_lshr_b32 s48, {sR}, 4\ns_mul_i32 s48, s48, 10\ns_bfm_b64 exec, 20, s48")
        self.tsl(25)
        w4pre = self.o.get("w4pre", 10)
        na, nw = 0, npre
        law = self.o.get("la3w", 1)
        mid0 = self.o.get("mid0", 4)
        csat = max(1, min(3, mid0 - law))
        for i in range(10):
            if i == csat:
                vm.wait("csf")
                lp, ok = k.lab("L_csl"), k.lab("L_csok")
                k(f"s_mov_b32 s49, 0\n{lp}:\nv_readfirstlane_b32 s48, v7\ns_add_u32 s49, s49, 1\ns_cmp_eq_u32 s48, 48\ns_cbranch_scc1 {ok}")
                k(f"s_cmp_gt_u32 s49, {SPIN}\ns_cbranch_scc1 {ok}\nbuffer_load_dword v7, off, {SDBG}, 0 offset:16 sc1\ns_waitcnt vmcnt(0)\ns_branch {lp}\n{ok}:")
                k(f"s_mov_b32 m0, {CSL}\ns_mov_b64 exec, s[76:77]")
                vm.issue("cs", f"buffer_load_dwordx4 v11, {SCS}, 0 offen sc1 lds")
                k("s_mov_b64 exec, -1")
            if i == max(0, csat - 2):
                vm.issue("csf", f"buffer_load_dword v7, off, {SDBG}, 0 offset:16 sc1")
            while na <= min(9, i + 1) or nw <= min(9, i + law):
                if na <= min(9, i + 1) and (na <= nw or nw > min(9, i + law)):
                    E(self.it_a3(na))
                    na += 1
                else:
                    assert nw <= max(3, i + 2) and (nw < mid0 or i >= csat)
                    E(self.it_w3(nw))
                    nw += 1
            self.w2_pref(10 + 3 * i, 13 + 3 * i)
            if i == self.o.get("hhpt", -1):
                k(f"s_lshl_b32 s48, {sR}, 2\ns_add_u32 s48, s48, s60\ns_mul_i32 s48, s48, 6144\nv_lshlrev_b32 v8, 7, v1\ns_mov_b64 exec, s[76:77]")
                vm.issue("pt", f"buffer_load_dword v9, v8, {SWS}, s48 offen")
                k("s_mov_b64 exec, -1")
            if 3 <= i <= 6:
                for q in range(10)[(i - 3) * 5 // 2:(i - 2) * 5 // 2]:
                    k(f"s_mov_b32 s56, {q*4096}")
                    vm.issue("st", f"buffer_load_dwordx2 v[{20+2*q}:{21+2*q}], v49, {SWS}, s56 offen sc1")
            if i == 8:
                vm.wait("st")
                for q in range(1, 10):
                    k(f"v_add_f32 v20, v20, v{20+2*q}\nv_add_f32 v21, v21, v{21+2*q}")
                k("v_mov_b32 v22, v20\nv_mov_b32 v23, v21")
                k("v_permlane32_swap_b32 v22, v20\nv_permlane32_swap_b32 v23, v21")
                k(f"s_mov_b32 s48, {f2u(1.0/640):#x}\ns_mov_b32 s49, {f2u(1e-5):#x}")
                k("v_add_f32 v20, v20, v22\nv_add_f32 v21, v21, v23")
                k("v_mul_f32 v20, s48, v20\nv_mul_f32 v21, s48, v21")
                k("v_fma_f32 v21, -v20, v20, v21\nv_max_f32 v21, 0, v21\nv_add_f32 v26, s49, v21")
                k(f"v_rsq_f32 v25, v26\nv_sub_f32 v24, 0, v20\nv_mov_b32 v27, 0\nv_mul_f32 v25, {f2u(-LOG2E):#x}, v25")
                k("ds_write_b128 v50, v[24:27]")
            if i == 9:
                for p in range(min(w4pre, self.o.get("w4a", 4))):
                    E(self.it_w4(p))
            vm.wait(("a3", i), ("w3", i))
            k("s_barrier")
            self.tsl(26 + i)
        nxt = min(w4pre, self.o.get("w4a", 4))
        while nxt < min(w4pre, 7):
            E(self.it_w4(nxt))
            nxt += 1
        k("s_waitcnt lgkmcnt(0)\ns_barrier")
        k(f"s_cmp_ge_u32 {sR}, 30\ns_cbranch_scc1 L_fin")
        while nxt < w4pre:
            E(self.it_w4(nxt))
            nxt += 1
        self.tsl(36)
        self.ld_poll(3, False, f"s_cmp_eq_u32 {sT}, 1\ns_cselect_b32 s48, 32, 16\ns_cmp_eq_u32 {sT}, 2\ns_cselect_b32 s49, 16, 0\ns_bfm_b64 exec, s48, s49")
        self.tsl(37)
        la = self.o.get("la4", 3)
        na = 0
        for i in range(24):
            while na <= min(23, i + la) and na <= max(5, i + 3):
                E(self.it_act88(("a4", na), na, A4S(na)))
                na += 1
            target = min(24, max(i + la + 1, w4pre + ((24 - w4pre) * max(0, i - 2) + 17) // 18))
            while nxt < target and (nxt < 10 or nxt - 8 <= i - 1):
                E(self.it_w4(nxt))
                nxt += 1
            vm.wait(("a4", i), ("w4", i))
            k("s_barrier")
            if i in (0, 8, 16, 23):
                self.tsl(38 + (i + 1) // 8)
        assert nxt == 24
        k("s_branch L_fin")

    def helper(self):
        k = self.k
        vm = VM(k)
        k("L_helper:")
        k(f"s_lshl_b32 s64, {sG}, 1\ns_add_u32 s64, s64, {sR}\ns_sub_u32 s64, s64, 30")
        k(f"v_lshlrev_b32 v4, 7, v1\ns_lshl_b32 s65, {sW}, 4\ns_add_u32 s65, s65, s64")
        if self.o.get("htouch", 1):
            k("s_lshl_b32 s49, s65, 13")
            vm.issue("t", f"buffer_load_dword v10, v4, {SWO}, s49 offen")
            if not self.o.get("w2s", 1):
                for n in range(2):
                    k(f"s_add_u32 s48, s65, {128*n}\ns_lshl_b32 s48, s48, 13")
                    vm.issue("t2", f"buffer_load_dword v10, v4, {SW2}, s48 offen")
        k("s_cmp_lt_u32 s64, 8\ns_cselect_b32 s96, s16, s20\ns_cselect_b32 s97, s17, s21\ns_mov_b32 s98, 1966080\ns_mov_b32 s99, 0x20000")
        k(f"v_lshrrev_b32 v5, 3, v1\nv_and_b32 v6, 7, v1\ns_lshl_b32 s48, {sW}, 3\nv_add_u32 v7, s48, v5\ns_movk_i32 s48, 3072\nv_mul_u32_u24 v5, s48, v7")
        k("s_and_b32 s50, s64, 7\ns_mul_i32 s48, s50, 384\nv_lshl_add_u32 v5, v6, 4, v5\nv_add_u32 v5, s48, v5")
        k(f"s_mul_i32 s48, s50, 163840\ns_lshr_b32 s49, s64, 3\ns_lshl_b32 s49, s49, 6\ns_add_u32 s48, s48, s49\ns_add_u32 s48, s48, {MID}")
        k("v_lshrrev_b32 v14, 2, v6\nv_mul_u32_u24 v14, 81920, v14\nv_lshl_add_u32 v14, v7, 7, v14\nv_and_b32 v13, 3, v6\nv_lshl_add_u32 v14, v13, 4, v14\nv_add_u32 v14, s48, v14")
        mid0 = self.o.get("mid0", 4)

        def grp(n):
            k(f"s_mov_b32 s48, {n*64*3072}")
            for q in range(3):
                vm.issue(("c", n), f"buffer_load_dwordx4 {vr(64 + 12*n + 4*q, 4)}, v5, s[96:99], s48 offen offset:{q*128}" + (" nt" if q == 1 and n >= mid0 and self.o.get("hnt", 0) else ""))
        hd = self.o.get("hdepth", 2)
        for n in range(hd):
            grp(n)
        k("v_mov_b32 v8, 0x3f80\nv_mov_b32 v9, 0x3f800000")
        for e in range(24):
            k(f"v_mov_b32 v{16+e}, 0")
        for n in range(10):
            vm.wait(("c", n))
            if n + hd < 10:
                grp(n + hd)
            if n >= mid0:
                k(f"s_mov_b32 s49, {n*64*128}")
                vm.issue("m", f"buffer_store_dwordx4 {vr(64 + 12*n + 4, 4)}, v14, {SCS}, s49 offen sc1")
            for q in range(3):
                for d in range(4):
                    k(f"v_dot2c_f32_bf16 v{16 + 8*q + 2*d}, v{64 + 12*n + 4*q + d}, v8\nv_dot2c_f32_bf16 v{17 + 8*q + 2*d}, v{64 + 12*n + 4*q + d}, v9")
        for e in range(24):
            k(f"v_add_f32_dpp v{16+e}, v{16+e}, v{16+e} row_ror:8 row_mask:0xf bank_mask:0xf")
        k(f"s_lshl_b32 s48, {sW}, 2\nv_add_u32 v7, s48, v3\ns_movk_i32 s48, 768\nv_mul_u32_u24 v7, s48, v7\nv_lshl_add_u32 v7, v6, 5, v7")
        for q in range(3):
            for h in range(2):
                k(f"ds_write_b128 v7, {vr(16 + 8*q + 4*h, 4)} offset:{HPART + q*256 + h*16}")
        k(self.HELLO_LD + "\ns_waitcnt vmcnt(0)")
        self.hello_check()
        k("s_waitcnt lgkmcnt(0)\ns_barrier")
        self.ts(3)
        k("s_cmp_eq_u32 s3, 1\ns_cbranch_scc1 L_help_ld")
        self.wtile_addr()
        k(f"s_cmp_eq_u32 {sW}, 3\ns_cbranch_scc1 L_comp_p3")
        k(f"v_lshlrev_b32 v4, 2, v0\nv_add_u32 v5, {HPART}, v4")
        for half in range(4):
            for e in range(8):
                k(f"ds_read_b32 v{64 + 8*half + e}, v5 offset:{(8*half + e)*768}")
            k("s_waitcnt lgkmcnt(0)")
        for st in (16, 8, 4, 2, 1):
            for e in range(st):
                k(f"v_add_f32 v{64+e}, v{64+e}, v{64+e+st}")
        k("s_mul_i32 s48, s64, 768")
        k(f"buffer_store_dword v64, v4, {SCS}, s48 offen sc1\nv_mov_b32 v5, 1\ns_waitcnt vmcnt(0)\ns_mov_b64 exec, 1")
        k(f"buffer_atomic_add v5, off, {SDBG}, 0 offset:16\ns_mov_b64 exec, -1")
        self.ts(11)
        k("s_branch L_comp_p3")
        k("L_help_ld:")
        if self.o.get("prio", 0):
            k("s_setprio 3")
        self.ld_lane_basics()
        self.ld_setup_w()
        self.ld_setup_rest()
        self.w2_pref_setup()
        self.w2_pref(0, 10)
        for i in range(min(2, self.o.get("w3pre", 2))):
            self.emit(vm, self.it_w3(i))
        k("s_branch L_ld_p3")

    def comp_p1(self):
        k = self.k
        k("L_comp:")
        k(f"s_mul_i32 s48, {sW}, 14336\ns_add_u32 s48, s48, 13312\nv_lshl_add_u32 v8, v1, 4, s48")
        self.attn_setup()
        k("ds_write_b128 v8, v[236:239]")
        k("v_lshrrev_b32 v57, 1, v2\nv_xor_b32 v57, v57, v3\nv_lshlrev_b32 v57, 4, v57\nv_lshl_add_u32 v4, v2, 7, v57\nv_xor_b32 v5, 64, v4")
        self.wfrag_addr(lambda: k(f"v_xor_b32 v57, {sW}, v57"))
        k(f"v_add_u32 v6, {W1S(0)}, v57\nv_add_u32 v7, {W1S(2)}, v57")
        k(f"v_lshlrev_b32 v8, 3, v2\nv_add_u32 v8, {STAT1}, v8")
        k("s_bfm_b64 exec, 8, 8\nds_write_b64 v8, v[26:27] offset:768\ns_mov_b64 exec, -1")
        k(f"v_and_b32 v57, 1, v2\ns_movk_i32 s48, {PB}\nv_mul_u32_u24 v57, s48, v57\nv_lshrrev_b32 v58, 1, v2\ns_movk_i32 s48, {RS}")
        k(f"v_mad_u32_u24 v57, v58, s48, v57\nv_lshl_add_u32 v57, v3, 3, v57\ns_lshl_b32 s48, {sW}, 5\ns_add_u32 s48, s48, {IMG+16}\nv_add_u32 v9, s48, v57")
        for m in range(7):
            k(f"v_add_u32 v{40+m}, {m*8*RS}, v9")
        k(f"v_mov_b32 v58, {OUTST}\nv_cmp_gt_u32 vcc, 8, v2\nv_cndmask_b32 v46, v58, v46, vcc")
        k(f"v_lshrrev_b32 v58, 1, v3\ns_lshr_b32 s48, {sW}, 1\nv_cmp_eq_u32 vcc, s48, v58\nv_mov_b32 v58, {OOB:#x}\nv_and_b32 v59, 1, v3\nv_lshlrev_b32 v56, 4, v2")
        k("s_movk_i32 s48, 1792\nv_mad_u32_u24 v57, v59, s48, v56\nv_cndmask_b32 v10, v58, v57, vcc\ns_movk_i32 s48, 768\nv_mad_u32_u24 v57, v59, s48, v56\nv_cndmask_b32 v13, v58, v57, vcc")
        k(f"s_mul_i32 s73, {sR}, 5120\ns_add_u32 s73, s73, {EXPB}\ns_add_u32 s74, s73, 3584\nv_mov_b32 v11, {PUREW}")
        k(f"s_cmp_lt_u32 {sJM}, 2\ns_cselect_b32 s48, 3, 0\ns_cmp_eq_u32 {sJM}, 2\ns_cselect_b32 s48, 9, s48\ns_cmp_eq_u32 s48, {sW}\ns_cselect_b32 s82, 1, 0")
        SA, SF, SC = (38, 39, 47, 60), (14, 18, 22, 56), (48, 52)
        for q in range(2):
            k(f"s_mul_i32 s48, {sW}, 26\ns_add_u32 s48, s48, {13*q}\nv_add_u32 v57, s48, v2\nv_mov_b32 v58, 104\nv_cmp_gt_u32 vcc, 13, v2\nv_cndmask_b32 v57, v58, v57, vcc")
            k(f"v_lshrrev_b32 v58, 1, v57\nv_and_b32 v58, 7, v58\nv_xor_b32 v58, v58, v3\nv_lshlrev_b32 v58, 4, v58\nv_lshl_add_u32 v{SA[2*q]}, v57, 7, v58\nv_xor_b32 v{SA[2*q+1]}, 64, v{SA[2*q]}")
        k(f"s_mul_i32 s48, {sW}, 208\ns_add_u32 s48, s48, {STAT1}\nv_lshl_add_u32 v61, v2, 3, s48")
        for q, mk in enumerate((0x22222222, 0x44444444, 0x88888888)):
            k(f"s_mov_b32 s{56+2*q}, {mk:#x}\ns_mov_b32 s{57+2*q}, {mk:#x}")
        k(f"s_mov_b32 s48, {f2u(1.0/640):#x}\ns_mov_b32 s49, {f2u(1e-5):#x}\ns_mov_b32 s50, 0x00f0000f\ns_mov_b32 s51, 0x10000f00")
        sreads = lambda i: [f"ds_read_b128 {vr(SF[e], 4)}, v{SA[e]} offset:{XS(i % 4)}" for e in range(4)]
        smf = lambda i: [f"v_mfma_f32_16x16x32_bf16 {vr(SC[e // 2], 4)}, {vr(SF[e], 4)}, {vr(SF[e], 4)}, "
                         + ("0" if i == 0 and e % 2 == 0 else vr(SC[e // 2], 4)) for e in (0, 2, 1, 3)]
        if self.o.get("x_nosr"):
            sreads = lambda i: []
        if self.o.get("x_nosm"):
            smf = lambda i: []
        fin = []
        for f in (lambda g, a, b: f"v_mov_b32 {a}, v{g+3}", lambda g, a, b: f"v_mov_b32 {b}, v{g+3}",
                  lambda g, a, b: f"v_cndmask_b32 v{g}, v{g}, v{g+1}, s[56:57]", lambda g, a, b: f"v_permlane32_swap_b32 {a}, {b}",
                  lambda g, a, b: f"v_cndmask_b32 v{g}, v{g}, v{g+2}, s[58:59]", lambda g, a, b: f"v_mov_b32 {a}, {b}",
                  lambda g, a, b: f"v_cndmask_b32 v{g}, v{g}, v{g+3}, s[60:61]", lambda g, a, b: f"v_permlane16_swap_b32 {a}, {b}",
                  lambda g, a, b: f"v_mul_f32 v{g}, s48, v{g}", lambda g, a, b: f"v_mul_f32 {b}, s48, -{b}",
                  lambda g, a, b: f"v_fma_f32 v{g}, -{b}, {b}, v{g}", lambda g, a, b: f"v_max_f32 v{g}, 0, v{g}",
                  lambda g, a, b: f"v_add_f32 v{g}, s49, v{g}", lambda g, a, b: f"v_rsq_f32 {a}, v{g}"):
            for q in range(2):
                fin.append(f(SC[q], f"v{14+2*q}", f"v{15+2*q}"))
        acc = lambda mat, m: (64 + 4 * (m - 1), 88 + 4 * m, 116 + 4 * m)[mat]
        tiles = [(mat, m) for m in range(7) for mat in range(3) if not (mat == 0 and m == 0)]

        def reads(n):
            i, s = n // 2, n % 2
            sl, st = i % 4, 144 + 40 * (n % 2)
            r = []
            wb, wo_ = (6, W1S(sl) - W1S(0)) if sl < 2 else (7, W1S(sl) - W1S(2))
            xr = [f"ds_read_b128 {vr(st + 4*m, 4)}, v{4+s} offset:{XS(sl) + m*2048}" for m in range(7)]
            wr = [f"ds_read_b64_tr_b16 {vr(st + 28 + 4*mat + 2*h, 2)}, v{wb} offset:{wo_ + mat*8192 + s*4096 + h*512}"
                  for mat in range(3) for h in range(2)]
            return wr + xr

        def mfmas(n):
            st = 144 + 40 * (n % 2)
            return [f"v_mfma_f32_16x16x32_bf16 {vr(acc(mat, m), 4)}, {vr(st + 28 + 4*mat, 4)}, {vr(st + 4*m, 4)}, "
                    + ("0" if n == 0 else vr(acc(mat, m), 4)) for (mat, m) in tiles]

        k("s_waitcnt lgkmcnt(0)")
        self.ts(1)
        k("s_barrier")
        self.ts(2)
        for r in reads(0) + sreads(0):
            k(r)
        for n in range(20):
            late = self.o.get("late1", 1)
            k("s_waitcnt lgkmcnt(4)" if n == 0 else "s_waitcnt lgkmcnt(0)")
            mm = mfmas(n)
            if n == 17 and late:
                for m in mm:
                    k(m)
                k("s_barrier")
                self.ts(11)
                for r in sreads(9) + reads(18):
                    k(r)
                k("s_waitcnt lgkmcnt(13)")
                for m in smf(9):
                    k(m)
                continue
            if n % 2 == 1 and n < 19:
                k("s_barrier")
                if self.o.get("ts") == 1 or n in (1, 17):
                    self.ts(2 + (n + 1) // 2)
            if n >= 18:
                if n == 18:
                    rr = reads(19)
                    for i, m in enumerate(mm):
                        k(m)
                        if rr:
                            k(rr.pop(0))
                        if i >= 3 and fin:
                            k(fin.pop(0))
                else:
                    mm = mm[-3:] + mm[:-3]
                    while fin:
                        k(mm.pop(0))
                        for x in fin[:2]:
                            k(x)
                        fin = fin[2:]
                    k("s_mov_b64 exec, s[50:51]\nds_write2_b64 v61, v[14:15], v[16:17] offset0:0 offset1:13\ns_mov_b64 exec, -1")
                    dp = [f"v_mov_b32_dpp v{160 + 4*mat + r}, v{acc(mat, 6) + r} row_newbcast:15 row_mask:0xf bank_mask:0xf" for mat in range(3) for r in range(4)]
                    for _ in range(4):
                        k(mm.pop(0))
                        k(dp.pop(0))
                        k(dp.pop(0))
                    k("s_waitcnt lgkmcnt(0)\ns_barrier")
                    sd = [f"ds_read_b64 {vr(144 + 2*m, 2)}, v8 offset:{m*128}" for m in (6, 0, 1, 2, 3, 4, 5)] + ["ds_read_b32 v11, v11"] + dp
                    for m in mm:
                        k(m)
                        for x in sd[:2]:
                            k(x)
                        sd = sd[2:]
                    assert not sd
            elif n % 2 == 1 or n == 0:
                interleave(k, mm, (sreads((n + 1) // 2) if n else []) + reads(n + 1))
                k("s_waitcnt lgkmcnt(13)")
                for m in smf((n + 1) // 2):
                    k(m)
            else:
                interleave(k, mm, reads(n + 1))
        self.ts(12)
        k(f"s_waitcnt lgkmcnt(0) vmcnt(0)\nv_readfirstlane_b32 {sSLOW}, v11")

        def conv(mat, m, d):
            a, st, cs = acc(mat, m), 144 + 2 * m, 160 + 4 * mat
            o = [f"v_pk_fma_f32 {vr(a + 2*q, 2)}, {vr(cs + 2*q, 2)}, {vr(st, 2)}, {vr(a + 2*q, 2)} op_sel:[0,1,0] op_sel_hi:[1,1,1]" for q in range(2)]
            if mat:
                o += [f"v_pk_mul_f32 {vr(a + 2*q, 2)}, {vr(a + 2*q, 2)}, {vr(st, 2)} op_sel_hi:[1,0]" for q in range(2)]
            o += [f"v_cvt_pk_bf16_f32 v{d}, v{a}, v{a+1}", f"v_cvt_pk_bf16_f32 v{d+1}, v{a+2}, v{a+3}"]
            return o

        def body(export):
            late = []
            ea = AUX[self.o.get("est", 0)]
            for g in [("kv", 6), ("kv", 0), ("kv", 1), ("kv", 2), ("q", 0), ("kv", 3), ("kv", 4), ("q", 1), ("kv", 5), ("q", 2)]:
                if g[0] == "kv":
                    m = g[1]
                    d = acc(1, m)
                    cv = conv(1, m, d) + conv(2, m, d + 2)
                    st = f"buffer_store_dwordx4 {vr(d, 4)}, v10, {SWS}, s73 offen offset:{m*256}{ea}"
                    wr = [f"ds_write2_b64 v{40+m}, {vr(d, 2)}, {vr(d+2, 2)} offset0:20 offset1:40"]
                else:
                    m = 2 * g[1] + 1
                    d = acc(0, m)
                    cv = conv(0, m, d) + conv(0, m + 1, d + 2)
                    st = f"buffer_store_dwordx4 {vr(d, 4)}, v13, {SWS}, s74 offen offset:{g[1]*256}{ea}"
                    wr = [f"ds_write_b64 v{40+m}, {vr(d, 2)}", f"ds_write_b64 v{41+m}, {vr(d+2, 2)}"]
                for x in cv:
                    k(x)
                if export:
                    k(st)
                    late += wr
                else:
                    for x in wr:
                        k(x)
            for x in late:
                k(x)

        lexp = k.lab("L_exp")
        k(f"s_cmp_eq_u32 s82, 1\ns_cbranch_scc1 {lexp}")
        body(False)
        k("s_branch L_attn")
        k(f"{lexp}:")
        body(True)
        k(f"s_cmp_eq_u32 {sSLOW}, 0\ns_cbranch_scc1 L_attn")
        k("s_waitcnt vmcnt(0)\nbuffer_wbl2 sc1")

    def wfrag_addr(self, xorj):
        k = self.k
        k("v_lshrrev_b32 v57, 3, v1\nv_and_b32 v57, 3, v57")
        xorj()
        k("v_lshlrev_b32 v57, 5, v57\nv_and_b32 v58, 3, v1\nv_lshl_add_u32 v57, v58, 3, v57")
        k("v_lshrrev_b32 v58, 2, v2\nv_lshl_add_u32 v58, v3, 3, v58\nv_lshl_add_u32 v57, v58, 7, v57")

    def attention(self):
        k = self.k
        k("L_attn:")
        k("s_waitcnt lgkmcnt(0)\ns_barrier")
        self.ts(13)
        sig, csig = k.lab("L_asig"), k.lab("L_csig")
        k(f"s_cmp_eq_u32 s68, 0\ns_cbranch_scc1 {sig}")
        QL = lambda b: 64 + 16 * b
        QH = lambda b: 68 + 16 * b
        K1 = lambda b: 72 + 16 * b
        K2 = lambda b: 76 + 16 * b
        V1 = 112
        V2 = lambda b: 120 + 4 * b
        Sx = lambda b: 132 + 4 * b
        P = lambda b: 26 + 4 * b
        O1 = lambda b: 144 + 4 * b
        O2 = 156
        L = lambda b: 160 + 4 * b
        M = lambda b: 172 + b
        C = lambda b: 176 + b
        BL = 16 * RS
        B3 = range(3)
        MF = "v_mfma_f32_16x16x32_bf16"

        def rd(b):
            k2 = 242 if b < 2 else 244
            for h in range(2):
                k(f"ds_read_b64 {vr(K1(b)+2*h, 2)}, v{240+h} offset:{b*BL + 160}")
            for h in range(2):
                k(f"ds_read_b64 {vr(QL(b)+2*h, 2)}, v{232+h} offset:{b*BL + 8*RS}")
            for h in range(2):
                k(f"ds_read_b64 {vr(K2(b)+2*h, 2)}, v{k2+h} offset:{b*BL + 160}")
            for h in range(2):
                k(f"ds_read_b64 {vr(QH(b)+2*h, 2)}, v{234+h} offset:{b*BL + 8*RS}")

        def s1(b):
            k(f"{MF} {vr(Sx(b), 4)}, {vr(K1(b), 4)}, {vr(QL(b), 4)}, {vr(228 if b == 0 else 224, 4)}")

        def s2(b):
            k(f"{MF} {vr(Sx(b), 4)}, {vr(K2(b), 4)}, {vr(QH(b), 4)}, {vr(Sx(b), 4)}")

        rd(0)
        rd(1)
        k("s_waitcnt lgkmcnt(8)")
        s1(0)
        s2(0)
        rd(2)
        k("s_waitcnt lgkmcnt(8)")
        s1(1)
        s2(1)
        for b in B3:
            k(f"ds_read_b32 v{C(b)}, v255 offset:{b*256}")
        for c in range(4):
            k(f"ds_read_b64_tr_b16 {vr(V1 + 2*c, 2)}, v{252 if c < 3 else 253} offset:{c*BL + 320}")
        k("s_waitcnt lgkmcnt(7)")
        s1(2)
        s2(2)
        for b in B3:
            for h in range(2):
                k(f"ds_read_b64_tr_b16 {vr(V2(b) + 2*h, 2)}, v{254 if b + h == 3 else 249 + b} offset:{(b+h)*BL + 352}")
        k(f"s_mov_b32 s48, {f2u(QSCALE):#x}\ns_mov_b32 s50, 0xff00ff00\ns_mov_b32 s51, 0\ns_not_b64 s[52:53], s[50:51]")
        for b in range(2):
            k(f"v_max3_f32 v{M(b)}, v{Sx(b)}, v{Sx(b)+1}, v{Sx(b)+2}")
        for b in range(2):
            k(f"v_max_f32 v{M(b)}, v{M(b)}, v{Sx(b)+3}")
        k("s_waitcnt lgkmcnt(10)")
        for b in B3:
            k(f"v_mul_f32 v{C(b)}, s48, v{C(b)}")
        k(f"v_max3_f32 v{M(2)}, v{Sx(2)}, v{Sx(2)+1}, v{Sx(2)+2}")
        k(f"v_permlane32_swap_b32 v{M(0)}, v{M(1)}")
        k(f"v_max_f32 v{M(2)}, v{M(2)}, v{Sx(2)+3}\nv_max_f32 v{M(0)}, v{M(0)}, v{M(1)}")
        k(f"v_mov_b32 v{M(3)}, v{M(2)}")
        k(f"v_permlane32_swap_b32 v{M(2)}, v{M(3)}")
        k(f"v_max_f32 v{M(2)}, v{M(2)}, v{M(3)}")
        k(f"v_permlane16_swap_b32 v{M(0)}, v{M(2)}")
        k(f"v_max_f32 v{M(0)}, v{M(0)}, v{M(2)}")
        k(f"v_mov_b32 v{M(2)}, v{M(0)}")
        k(f"v_permlane16_swap_b32 v{M(0)}, v{M(2)}")
        k(f"v_mov_b32 v{M(1)}, v{M(0)}\nv_mul_f32 v{M(2)}, v{C(2)}, v{M(2)}")
        k(f"v_permlane32_swap_b32 v{M(0)}, v{M(1)}")
        for q in range(4):
            k(f"v_fma_f32 v{Sx(2)+q}, v{Sx(2)+q}, v{C(2)}, -v{M(2)}")
        for b in range(2):
            k(f"v_mul_f32 v{M(b)}, v{C(b)}, v{M(b)}")
        for b in range(2):
            for q in range(4):
                k(f"v_fma_f32 v{Sx(b)+q}, v{Sx(b)+q}, v{C(b)}, -v{M(b)}")
        for b in B3:
            for q in range(4):
                k(f"v_exp_f32 v{Sx(b)+q}, v{Sx(b)+q}")
        for h, mk in enumerate(("s[52:53]", "s[50:51]")):
            k(f"s_mov_b64 exec, {mk}")
            for b in B3:
                for q in range(2):
                    k(f"v_cvt_pk_bf16_f32 v{P(b)+2*h+q}, v{Sx(b)+2*q}, v{Sx(b)+2*q+1}")
        k("s_mov_b64 exec, -1\ns_waitcnt lgkmcnt(0)")
        for b in B3:
            k(f"{MF} {vr(L(b), 4)}, v[236:239], {vr(P(b), 4)}, 0")
        for b in B3:
            k(f"{MF} {vr(O1(b), 4)}, {vr(V1 + 2*b, 4)}, {vr(P(b), 4)}, 0")
        k("v_cmp_eq_u32 s[50:51], 1, v3\nv_cmp_lt_u32 s[52:53], 1, v3")
        for b in B3:
            k(f"{MF} {vr(O2, 4)}, {vr(V2(b), 4)}, {vr(P(b), 4)}, {'0' if b == 0 else vr(O2, 4)}")
            k(f"v_rcp_f32 v{L(b)}, v{L(b)}")
        oa = AUX[self.o.get("ost", 1)]
        PK = 180
        for b in B3:
            for q in range(4):
                k(f"v_mul_f32 v{O1(b)+q}, v{O1(b)+q}, v{L(b)}")
            if b:
                k(f"v_cndmask_b32 v{L(0)+1}, v{L(0) + (b > 1)}, v{L(b)}, s[{48+2*b}:{49+2*b}]")
            k(f"v_cvt_pk_bf16_f32 v{PK+2*b}, v{O1(b)}, v{O1(b)+1}\nv_cvt_pk_bf16_f32 v{PK+2*b+1}, v{O1(b)+2}, v{O1(b)+3}")
        k(f"v_permlane16_swap_b32 v{PK}, v{PK+2}\nv_permlane16_swap_b32 v{PK+1}, v{PK+3}")
        k(f"v_mov_b32 v{PK+6}, v{PK+4}\nv_mov_b32 v{PK+7}, v{PK+5}")
        k(f"buffer_store_dwordx4 {vr(PK, 4)}, v246, {SWS}, 0 offen{oa}")
        k(f"v_mul_f32 v{O2}, v{O2}, v{L(0)+1}")
        k(f"v_permlane16_swap_b32 v{PK+4}, v{PK+6}\nv_permlane16_swap_b32 v{PK+5}, v{PK+7}")
        k(f"buffer_store_dwordx4 {vr(PK+4, 4)}, v247, {SWS}, 0 offen offset:512{oa}")
        for q in range(1, 4):
            k(f"v_mul_f32 v{O2+q}, v{O2+q}, v{L(0)+1}")
        k(f"v_cvt_pk_bf16_f32 v{O2}, v{O2}, v{O2+1}\nv_cvt_pk_bf16_f32 v{O2+1}, v{O2+2}, v{O2+3}")
        k(f"buffer_store_dwordx2 {vr(O2, 2)}, v248, {SWS}, 0 offen{oa}")
        k(f"{sig}:")
        self.ts(15)
        k(f"s_cmp_eq_u32 s3, 0\ns_cbranch_scc1 {csig}")
        n = self.ld_attn_mid()
        self.signal(1, younger=n)
        self.ts(16)
        k("s_branch L_ld_p2")
        k(f"{csig}:")
        self.signal(1)
        self.ts(16)

    WIN = (0, 98304)

    def gemm88(self, nst, wslot, aoff, tsbase, rem=99, endbar=False):
        k = self.k
        acc = lambda i, a: 64 + 8 * i + 4 * a

        def reads(s, ks):
            st = 88 + 40 * (s % 2) + 20 * ks
            w = wslot(s)
            win = 1 if w >= self.WIN[1] else 0
            r = []
            for a in range(2):
                for h in range(2):
                    r.append(f"ds_read_b64_tr_b16 {vr(st + 12 + 4*a + 2*h, 2)}, v{40 + 2*win + a} offset:{w - self.WIN[win] + ks*4096 + h*512}")
            for i in range(3):
                if s >= rem:
                    for h in range(2):
                        r.append(f"ds_read_b64 {vr(st + 4*i + 2*h, 2)}, v{52+i} offset:{aoff(s) + ks*3072 + h*1536}")
                else:
                    r.append(f"ds_read_b128 {vr(st + 4*i, 4)}, v44 offset:{aoff(s) + ks*1408 + i*256}")
            return r

        def mfmas(s, ks):
            st = 88 + 40 * (s % 2) + 20 * ks
            return [f"v_mfma_f32_16x16x32_bf16 {vr(acc(i, a), 4)}, {vr(st + 12 + 4*a, 4)}, {vr(st + 4*i, 4)}, {vr(acc(i, a), 4)}"
                    for i in range(3) for a in range(2)]

        def mix(mm, rr):
            ex = len(rr) - len(mm)
            for i, m in enumerate(mm):
                k(m)
                for _ in range(2 if i < ex else 1):
                    if rr:
                        k(rr.pop(0))

        k("s_barrier")
        self.ts(tsbase)
        for r in reads(0, 0) + reads(0, 1):
            k(r)
        for s in range(1, nst):
            if s == nst - 1 and self.o.get("late_last", 1):
                k(f"s_waitcnt lgkmcnt({len(reads(s-1, 1))})")
                mix(mfmas(s - 1, 0), [])
                k("s_waitcnt lgkmcnt(0)")
                mix(mfmas(s - 1, 1), [])
                k("s_barrier")
                for r in reads(s, 0) + reads(s, 1):
                    k(r)
            else:
                k(f"s_barrier\ns_waitcnt lgkmcnt({len(reads(s-1, 1))})")
                mix(mfmas(s - 1, 0), reads(s, 0))
                k(f"s_waitcnt lgkmcnt({len(reads(s, 0))})\ns_nop 0")
                mix(mfmas(s - 1, 1), reads(s, 1))
        k(f"s_waitcnt lgkmcnt({len(reads(nst-1, 1))})")
        mix(mfmas(nst - 1, 0), [])
        k("s_waitcnt lgkmcnt(0)")
        if endbar:
            k("s_barrier")
        mix(mfmas(nst - 1, 1), [])

    def wtile_addr(self):
        k = self.k
        k(f"s_and_b32 s72, {sW}, 1\ns_lshl_b32 s48, s72, 1")
        self.wfrag_addr(lambda: k("v_xor_b32 v57, s48, v57"))
        k(f"v_mov_b32 v40, v57\nv_xor_b32 v41, 32, v57\nv_add_u32 v42, {self.WIN[1]}, v40\nv_add_u32 v43, {self.WIN[1]}, v41")

    def unpack_acc(self, src):
        k = self.k
        for i in range(3):
            for a in range(2):
                for q in range(2):
                    d, s = 64 + 8 * i + 4 * a + 2 * q, src + 4 * i + 2 * a + q
                    k(f"v_lshlrev_b32 v{d}, 16, v{s}\nv_and_b32 v{d+1}, 0xffff0000, v{s}")

    def comp_p2(self):
        k = self.k
        k(f"s_and_b32 s64, {sW}, 1\ns_lshr_b32 s65, {sW}, 1")
        self.wtile_addr()
        k("s_mul_i32 s66, s65, 48\nv_add_u32 v45, s66, v2")
        k(f"s_movk_i32 s48, 176\nv_mad_u32_u24 v57, v3, s48, v45\nv_lshlrev_b32 v57, 4, v57\nv_add_u32 v44, {XRES}, v57")
        k("s_lshl_b32 s48, s64, 2\nv_lshrrev_b32 v57, 1, v3\nv_or_b32 v57, s48, v57\nv_and_b32 v58, 7, v2\nv_xor_b32 v57, v57, v58")
        k(f"v_lshlrev_b32 v57, 4, v57\nv_and_b32 v58, 1, v3\nv_lshl_add_u32 v57, v58, 3, v57\nv_lshl_add_u32 v46, v45, 7, v57\nv_xor_b32 v47, 32, v46")
        k(f"s_lshl_b32 s48, {sJ}, 1\ns_add_u32 s48, s48, s64\ns_mul_i32 s50, {sT}, 88")
        k(f"s_lshl_b32 s49, s48, 14\ns_lshl_b32 s51, s50, 4\ns_add_u32 s49, s49, s51\ns_add_u32 s49, s49, {HBUF}")
        k("v_lshlrev_b32 v57, 4, v45\nv_lshl_add_u32 v57, v3, 12, v57\nv_add_u32 v48, s49, v57")
        k(f"s_lshl_b32 s67, {sNP}, 1\ns_sub_u32 s51, s67, 32\nv_cmp_gt_u32 vcc, s51, v45\nv_mov_b32 v58, {OOB:#x}\nv_cndmask_b32 v49, v58, v48, vcc")
        k(f"s_lshl_b32 s49, s48, 8\ns_add_u32 s49, s49, s50\ns_lshl_b32 s49, s49, 3\ns_add_u32 s49, s49, {STAT2}")
        k("v_lshl_add_u32 v57, v45, 3, s49\nv_lshrrev_b32 v59, 2, v2\nv_cmp_eq_u32 s[48:49], v59, v3\nv_cndmask_b32 v50, v58, v57, s[48:49]\nv_cndmask_b32 v51, v58, v50, vcc")
        k(f"s_movk_i32 s48, 384\nv_mul_u32_u24 v56, s48, v3\nv_add_u32 v56, {XRES}, v56\ns_sub_u32 s48, 768, {sNP}")
        for i in range(3):
            k(f"v_add_u32 v57, {16*i}, v45\nv_add_u32 v59, s48, v57\nv_cmp_gt_u32 vcc, {sNP}, v57\nv_cndmask_b32 v57, v59, v57, vcc\nv_lshl_add_u32 v{52+i}, v57, 3, v56")
        for q, mk in enumerate((0x22222222, 0x44444444, 0x88888888)):
            k(f"s_mov_b32 s{56+2*q}, {mk:#x}\ns_mov_b32 s{57+2*q}, {mk:#x}")
        k("s_barrier")
        self.ts(21)
        for i in range(3):
            for a in range(2):
                k(f"ds_read_b64 {vr(168 + 4*i + 2*a, 2)}, v{46+a} offset:{XRES + i*2048}")
        k("s_waitcnt lgkmcnt(0)")
        self.unpack_acc(168)
        self.gemm88(10, lambda s: WOP[s], lambda s: A2L[s] - XRES, 22, rem=8, endbar=True)
        self.ts(23)
        for i in range(3):
            for a in range(2):
                s = 64 + 8 * i + 4 * a
                k(f"v_cvt_pk_bf16_f32 v{240 + 4*i + 2*a}, v{s}, v{s+1}\nv_cvt_pk_bf16_f32 v{241 + 4*i + 2*a}, v{s+2}, v{s+3}")
            k(f"buffer_store_dwordx4 {vr(240 + 4*i, 4)}, v{48 if i < 2 else 49}, {SWS}, 0 offen offset:{i*256}" + AUX[self.o.get("hst", 1)])
            k(f"v_mfma_f32_16x16x32_bf16 {vr(88 + 8*i, 4)}, v[236:239], {vr(240 + 4*i, 4)}, 0")
            k(f"v_mfma_f32_16x16x32_bf16 {vr(92 + 8*i, 4)}, {vr(240 + 4*i, 4)}, {vr(240 + 4*i, 4)}, 0")
        for i in range(3):
            g = 92 + 8 * i
            k(f"v_cndmask_b32 v{g}, v{g}, v{g+1}, s[56:57]\nv_cndmask_b32 v{g}, v{g}, v{g+2}, s[58:59]\nv_cndmask_b32 v{89 + 8*i}, v{g}, v{g+3}, s[60:61]")
            k(f"buffer_store_dwordx2 {vr(88 + 8*i, 2)}, v{50 if i < 2 else 51}, {SWS}, 0 offen offset:{i*128}")
        self.signal(2)
        self.ts(24)

    def comp_p3(self):
        k = self.k
        k("L_comp_p3:")
        k(f"s_and_b32 s64, {sW}, 1\ns_lshr_b32 s65, {sW}, 1")
        k("s_mul_i32 s48, s64, 96\nv_xor_b32 v4, s48, v40\nv_xor_b32 v5, 64, v4")
        k(f"v_add_u32 v6, {self.WIN[1]}, v4\nv_add_u32 v7, {self.WIN[1]}, v5")
        k(f"s_and_b32 s51, {sR}, 1\ns_add_u32 s48, s51, s64\ns_lshl_b32 s48, s48, 7\ns_add_u32 s48, s48, {CSL}\nv_lshl_add_u32 v36, v3, 4, s48\nv_add_u32 v37, 64, v36")
        k(f"s_xor_b32 s48, s51, 1\ns_lshl_b32 s48, s48, 2\ns_add_u32 s48, s48, s64\ns_lshl_b32 s48, s48, 6\ns_add_u32 s48, s48, {CSL}\nv_lshl_add_u32 v38, v3, 4, s48")
        k(f"s_lshl_b32 s48, s65, 6\nv_add_u32 v57, s48, v2\nv_lshl_add_u32 v58, v3, 7, v57\nv_lshlrev_b32 v58, 4, v58\nv_add_u32 v10, {A3S(0)}, v58")
        k(f"v_lshlrev_b32 v11, 4, v57\nv_add_u32 v11, {STAT3}, v11")
        k(f"s_and_b32 s48, {sR}, 15\ns_mul_i32 s48, s48, 3\ns_lshr_b32 s49, {sR}, 4\ns_lshl_b32 s49, s49, 11")
        k("v_lshlrev_b32 v57, 4, v57\nv_lshl_add_u32 v57, v3, 12, v57\nv_add_u32 v57, s49, v57")
        k("s_add_u32 s49, s64, s51\ns_add_u32 s49, s49, s48\ns_lshl_b32 s49, s49, 14\nv_add_u32 v52, s49, v57")
        k("s_xor_b32 s49, s51, 1\ns_lshl_b32 s49, s49, 1\ns_add_u32 s49, s49, s48\ns_lshl_b32 s49, s49, 14\ns_lshl_b32 s50, s64, 13\ns_add_u32 s49, s49, s50")
        k("v_lshrrev_b32 v58, 1, v3\nv_sub_u32 v58, v58, v3\nv_lshl_add_u32 v58, v58, 12, v57\nv_and_b32 v59, 1, v3\nv_lshl_add_u32 v58, v59, 8, v58\nv_add_u32 v53, s49, v58")
        acc = lambda i, mat, a: 64 + 24 * i + 12 * mat + 4 * a
        cs = lambda mat, a: 12 + 12 * mat + 4 * a

        def reads(n):
            i, s = n // 2, n % 2
            st = 160 + 40 * (n % 2)
            w = W3S[i % 4]
            win = 1 if w >= self.WIN[1] else 0
            wo_ = w - self.WIN[win] + s * 4096
            wr = [f"ds_read_b64_tr_b16 {vr(st + 16 + 12*mat + 4*a + 2*h, 2)}, "
                  + (f"v{40 + 2*win + a} offset:{wo_ + mat*8192 + h*512}" if a < 2 else f"v{4 + 2*win + mat} offset:{wo_ + 16384 + h*512}")
                  for mat in range(2) for a in range(3) for h in range(2)]
            ar = [f"ds_read_b128 {vr(st + 4*m, 4)}, v10 offset:{A3S(i % 3) - A3S(0) + s*8192 + m*256}" for m in range(4)]
            return ar[:1] + wr[:6] + ar[1:] + wr[6:]

        def mfmas(n):
            st = 160 + 40 * (n % 2)
            o = []
            for mat in range(2):
                for m in range(4):
                    for a in range(3):
                        o.append(f"v_mfma_f32_16x16x32_bf16 {vr(acc(m, mat, a), 4)}, {vr(st + 16 + 12*mat + 4*a, 4)}, {vr(st + 4*m, 4)}, "
                                 + ("0" if n == 0 else vr(acc(m, mat, a), 4)))
            return o

        k("s_barrier")
        self.ts(25)
        k("s_barrier")
        self.ts(26)
        for r in reads(0):
            k(r)
        for n in range(20):
            k("s_waitcnt lgkmcnt(0)")
            if n % 2 == 1:
                k("s_barrier")
            if self.o.get("al"):
                k(".p2align 3")
            side = reads(n + 1) if n < 19 else ([f"ds_read_b128 {vr(160 + 4*m, 4)}, v11 offset:{m*256}" for m in range(4)]
                                         + [f"ds_read_b128 {vr(cs(mat, a), 4)}, v{36+a} offset:{mat*384}" for mat in range(2) for a in range(3)])
            interleave(k, mfmas(n), side)
        self.ts(36)
        k("s_waitcnt lgkmcnt(0)")
        T = 176

        def pair(m, a, t, dst):
            G, U, st = acc(m, 0, a), acc(m, 1, a), 160 + 4 * m
            o = []
            for q in range(2):
                o.append(f"v_pk_fma_f32 {vr(G+2*q, 2)}, {vr(cs(0, a)+2*q, 2)}, {vr(st, 2)}, {vr(G+2*q, 2)} op_sel_hi:[1,0,1]")
            for q in range(2):
                o.append(f"v_pk_mul_f32 {vr(t+2*q, 2)}, {vr(G+2*q, 2)}, {vr(st, 2)} op_sel:[0,1] op_sel_hi:[1,1]")
            for q in range(4):
                o.append(f"v_exp_f32 v{t+q}, v{t+q}")
            for q in range(2):
                o.append(f"v_pk_fma_f32 {vr(U+2*q, 2)}, {vr(cs(1, a)+2*q, 2)}, {vr(st, 2)}, {vr(U+2*q, 2)} op_sel_hi:[1,0,1]")
            for q in range(2):
                o.append(f"v_pk_fma_f32 {vr(t+2*q, 2)}, {vr(t+2*q, 2)}, {vr(st+2, 2)}, {vr(st+2, 2)} op_sel_hi:[1,0,0]")
            for q in range(2):
                o.append(f"v_pk_mul_f32 {vr(G+2*q, 2)}, {vr(G+2*q, 2)}, {vr(U+2*q, 2)}")
            for q in range(4):
                o.append(f"v_rcp_f32 v{t+q}, v{t+q}")
            for q in range(2):
                o.append(f"v_pk_mul_f32 {vr(G+2*q, 2)}, {vr(G+2*q, 2)}, {vr(t+2*q, 2)}")
            o.append(f"v_cvt_pk_bf16_f32 v{dst}, v{G}, v{G+1}")
            o.append(f"v_cvt_pk_bf16_f32 v{dst+1}, v{G+2}, v{G+3}")
            return o

        ha = AUX[self.o.get("hhst", 1)]
        for m in range(4):
            dst, sg = 200 + 4 * m, 216 + 2 * m
            ps = [pair(m, a, T + 4 * a, dst + 2 * a if a < 2 else sg) for a in range(3)]
            for x in zip(*ps):
                for y in x:
                    k(y)
            k(f"buffer_store_dwordx4 {vr(dst, 4)}, v52, {SWS}, 0 offen offset:{m*256}{ha}")
            if m % 2:
                k(f"v_permlane16_swap_b32 v{sg-2}, v{sg}\nv_permlane16_swap_b32 v{sg-1}, v{sg+1}")
                k(f"buffer_store_dwordx4 {vr(sg-2, 4)}, v53, {SWS}, 0 offen offset:{(m-1)*256}{ha}")
        self.ts(37)
        self.signal(3)
        self.ts(38)
        k(f"s_cmp_ge_u32 {sR}, 30\ns_cbranch_scc1 L_fin")

    def comp_p4(self):
        k = self.k
        self.unpack_acc(240)
        k(f"v_add_u32 v44, {A4S(0) - XRES}, v44")
        k("v_lshrrev_b32 v56, 2, v1\nv_and_b32 v55, 3, v1")
        k(f"s_lshl_b32 s48, {sJ}, 7\ns_lshl_b32 s49, s64, 6\ns_add_u32 s48, s48, s49\nv_lshl_add_u32 v54, v55, 4, s48")
        k(f"v_mov_b32 v60, {OOB:#x}\ns_sub_u32 s49, s67, 1\ns_movk_i32 s50, 1280")
        for i in range(3):
            k(f"s_add_u32 s48, s66, {16*i}\nv_add_u32 v57, s48, v56\nv_lshlrev_b32 v58, 1, v57\nv_subrev_u32 v59, s49, v58")
            k(f"v_cmp_gt_u32 vcc, {sNP}, v57\nv_cndmask_b32 v58, v59, v58, vcc\nv_add_u32 v58, {sROW}, v58\nv_mad_u32_u24 v58, v58, s50, v54")
            k(f"v_cmp_gt_u32 vcc, s67, v57\nv_cndmask_b32 v{46+i}, v60, v58, vcc")
        k(f"s_mul_i32 s48, {sW}, 1280\ns_add_u32 s48, s48, {OUTST}\ns_movk_i32 s49, 80")
        k("v_lshl_add_u32 v57, v3, 3, s48\nv_mad_u32_u24 v49, v2, s49, v57\nv_lshl_add_u32 v57, v55, 4, s48\nv_mad_u32_u24 v50, v56, s49, v57")
        k("s_barrier")
        self.ts(39)
        self.gemm88(24, lambda s: W4P[s % 10], lambda s: A4S(s) - A4S(0), 40)
        self.ts(41)
        for i in range(3):
            for a in range(2):
                s = 64 + 8 * i + 4 * a
                k(f"v_cvt_pk_bf16_f32 v{s}, v{s}, v{s+1}\nv_cvt_pk_bf16_f32 v{s+1}, v{s+2}, v{s+3}")
            k(f"ds_write2_b64 v49, {vr(64 + 8*i, 2)}, {vr(68 + 8*i, 2)} offset0:0 offset1:4")
            k(f"ds_read_b128 {vr(88 + 4*i, 4)}, v50")
        for i in range(3):
            k(f"s_waitcnt lgkmcnt({2*(2-i)})")
            k(f"buffer_store_dwordx4 {vr(88 + 4*i, 4)}, v{46+i}, {SOUT}, 0 offen" + AUX[self.o.get("outst", 0)])
        if self.o.get("ts"):
            k("s_waitcnt vmcnt(0)")
        self.ts(42)

    def build(self):
        k = self.k
        self.prologue()
        self.loader_p1()
        self.loader_rest()
        self.helper()
        self.comp_start()
        self.comp_p1()
        self.attention()
        self.comp_p2()
        self.comp_p3()
        self.comp_p4()
        k("L_fin:")
        self.ts_flush()
        k("L_end:\ns_endpgm")
        if self.o.get("nomf"):
            k.ins = [i for i in k.ins if not (i.cls == "mfma" and i.wr == i.srcc)]
        body = k.finalize()
        kn = NAME + "_kernel"
        return (HDR + "; One persistent launch: 256 workgroups (8 groups of 32), 4 MFMA waves + 4 loader waves each.\n"
                "; @launch grid=(256,1,1) block=(512,1,1) lds=163840\n"
                '.amdgcn_target "amdgcn-amd-amdhsa--gfx950"\n.text\n'
                f".globl {kn}\n.p2align 8\n.type {kn},@function\n{kn}:\n" + body +
                '.section .rodata,"a"\n.p2align 6\n'
                f".amdhsa_kernel {kn}\n  .amdhsa_next_free_vgpr 256\n  .amdhsa_next_free_sgpr 102\n  .amdhsa_accum_offset 256\n"
                "  .amdhsa_group_segment_fixed_size 0\n  .amdhsa_kernarg_size 80\n  .amdhsa_user_sgpr_count 2\n"
                "  .amdhsa_user_sgpr_kernarg_segment_ptr 1\n  .amdhsa_system_sgpr_workgroup_id_x 1\n"
                "  .amdhsa_float_denorm_mode_32 3\n.end_amdhsa_kernel\n")


if __name__ == "__main__":
    out = sys.argv[1]
    opt = {}
    for a in sys.argv[2:]:
        kk, vv = a.split("=")
        opt[kk] = int(vv)
    g = Gen(opt)
    open(out, "w").write(g.build())
    print(f"wrote {out}: {len(g.k.ins)} lines, {g.k.nops} hazard nops")
```

```python
import re

TRANS = ("v_exp_f32", "v_log_f32", "v_rcp_f32", "v_rsq_f32", "v_sqrt_f32", "v_sin_f32", "v_cos_f32")
REG_RE = re.compile(r"^(-?)(?:abs\()?([vsa])(?:(\d+)|\[(\d+):(\d+)\])\)?$")


def regs_of(op):
    op = op.strip()
    if op in ("vcc", "vcc_lo", "vcc_hi"):
        return {("s", "vcc")}
    if op in ("exec", "exec_lo", "exec_hi"):
        return {("s", "exec")}
    if op == "m0":
        return {("s", "m0")}
    m = REG_RE.match(op)
    if not m:
        return set()
    k = m.group(2)
    if m.group(3) is not None:
        return {(k, int(m.group(3)))}
    return {(k, i) for i in range(int(m.group(4)), int(m.group(5)) + 1)}


class Ins:
    __slots__ = ("text", "op", "cls", "rd", "wr", "srcc", "ab", "passes", "dpp", "target", "states", "islabel", "lds")

    def __init__(self, text):
        self.text = text
        self.islabel = text.endswith(":")
        self.rd, self.wr, self.srcc, self.ab = set(), set(), set(), set()
        self.passes = 0
        self.dpp = False
        self.lds = False
        self.target = None
        self.states = 1
        if self.islabel or text.startswith("."):
            self.op, self.cls, self.states = "", "label" if self.islabel else "dir", 0
            return
        parts = text.split(None, 1)
        op = parts[0]
        self.op = op
        rest = parts[1] if len(parts) > 1 else ""
        ops, depth, cur = [], 0, ""
        for ch in rest:
            if ch in "[(":
                depth += 1
            if ch in "])":
                depth -= 1
            if ch == "," and depth == 0:
                ops.append(cur.strip())
                cur = ""
            else:
                cur += ch
        if cur.strip():
            ops.append(cur.strip())
        mods = ""
        if ops:
            last = ops[-1].split(None, 1)
            ops[-1] = last[0]
            mods = last[1] if len(last) > 1 else ""
        R = [regs_of(o) for o in ops]
        U = lambda xs: set().union(*xs) if xs else set()
        if op.startswith("v_mfma") or op.startswith("v_smfmac"):
            self.cls = "mfma"
            self.passes = 8 if "32x32" in op else 4
            self.wr = R[0]
            self.ab = R[1] | R[2]
            self.srcc = R[3] if op.startswith("v_mfma") else R[0]
            self.rd = self.ab | self.srcc | R[3]
        elif op.startswith("v_"):
            self.cls = "valu"
            self.dpp = "_dpp" in op
            if op.startswith("v_cmp"):
                self.wr, self.rd = R[0], U(R[1:])
            elif op.startswith("v_permlane") or op.startswith("v_swap"):
                self.wr = self.rd = R[0] | R[1]
            elif op.startswith("v_add_co") or op.startswith("v_addc_co") or op.startswith("v_sub_co"):
                self.wr, self.rd = R[0] | R[1], U(R[2:])
            else:
                self.wr, self.rd = R[0], U(R[1:])
                if op.startswith("v_fmac") or op.startswith("v_dot2c") or op.startswith("v_writelane") or self.dpp:
                    self.rd = self.rd | R[0]
                if op.startswith("v_dot2c"):
                    self.srcc = R[0]
                    self.ab = U(R[1:])
        elif op.startswith("ds_"):
            self.cls = "ds"
            if op.startswith("ds_read") or op.startswith("ds_bpermute") or op.startswith("ds_swizzle"):
                self.wr, self.rd = R[0], U(R[1:])
            else:
                self.rd = U(R)
        elif op.startswith("buffer_") or op.startswith("global_"):
            self.cls = "vmem"
            self.lds = " lds" in (" " + mods)
            if "load" in op and not self.lds:
                self.wr, self.rd = R[0], U(R[1:])
            else:
                self.rd = U(R)
                if self.lds:
                    self.rd = self.rd | {("s", "m0")}
                if op.endswith("x4") and "store" in op:
                    self.srcc = R[0] if op.startswith("buffer_") else R[1]
        elif op.startswith("s_"):
            self.cls = "salu"
            if op == "s_nop":
                self.states = int(ops[0], 0) + 1
            elif op.startswith("s_cbranch") or op == "s_branch":
                self.cls = "branch"
                self.target = ops[0]
            elif op in ("s_waitcnt", "s_barrier", "s_endpgm", "s_setprio", "s_sleep"):
                self.cls = "misc"
            elif op.startswith("s_cmp") or op.startswith("s_bitcmp"):
                self.rd = U(R)
            elif "saveexec" in op:
                self.wr, self.rd = R[0] | {("s", "exec")}, U(R[1:])
            else:
                self.wr, self.rd = R[0], U(R[1:])
        else:
            raise ValueError("unknown instruction: " + text)


def need(p, c):
    n = 0
    V = lambda s: {r for r in s if r[0] in "va"}
    S = lambda s: {r for r in s if r[0] == "s"}
    if p.cls == "valu":
        pw = V(p.wr)
        isdot = p.op.startswith("v_dot")
        if c.cls == "mfma" and pw & c.rd:
            n = max(n, 3 if isdot else 2)
        if c.cls == "valu":
            if (c.op.startswith("v_readfirstlane") or c.op.startswith("v_readlane")) and pw & c.rd:
                n = max(n, 1)
            if p.op.replace("_e32", "").replace("_e64", "") in TRANS and pw & c.rd:
                n = max(n, 1)
            if (c.dpp or c.op.startswith("v_permlane")) and pw & c.rd:
                n = max(n, 2)
            if S(p.wr) & c.rd:
                n = max(n, 4 if ("lane" in c.op and not c.op.startswith("v_permlane")) else 2)
        if isdot and c.cls in ("valu", "ds", "vmem"):
            if c.op == p.op:
                if pw & c.ab:
                    n = max(n, 3)
            elif pw & (c.rd | c.wr):
                n = max(n, 3)
        if c.cls == "vmem" and S(p.wr) & c.rd:
            n = max(n, 5)
        if c.cls == "salu" and S(p.wr) & c.rd:
            n = max(n, 1)
    elif p.cls == "mfma":
        big = {4: 8, 8: 12}[p.passes]
        if c.cls in ("valu", "ds", "vmem") and p.wr & (c.rd | c.wr):
            n = max(n, big)
        if c.cls == "mfma":
            if p.wr & c.ab:
                n = max(n, big)
            if p.wr & c.srcc and not (p.wr == c.srcc and p.passes == c.passes):
                n = max(n, big - 2)
            if p.wr & c.wr and not (p.wr == c.srcc):
                n = max(n, big - 2)
        if c.cls == "valu" and p.srcc & c.wr:
            n = max(n, {4: 3, 8: 7}[p.passes])
    elif p.cls == "salu":
        if ("s", "m0") in p.wr and c.cls == "vmem" and c.lds:
            n = max(n, 1)
    elif p.cls == "vmem":
        if p.srcc and p.srcc & c.wr:
            n = max(n, 2)
    return n


class K:
    def __init__(self):
        self.ins = []
        self.uid = 0

    def __call__(self, text):
        for ln in text.split("\n"):
            ln = ln.split(";")[0].strip()
            if ln:
                self.ins.append(Ins(ln))

    def lab(self, base="L"):
        self.uid += 1
        return f"{base}_{self.uid}"

    def finalize(self):
        out = []
        WIN = 14
        hist = [[]]
        pend = {}
        nops = 0
        for c in self.ins:
            if c.cls == "label":
                name = c.text[:-1]
                hist = hist + pend.pop(name, [])
                out.append(c)
                continue
            if c.cls == "dir":
                out.append(c)
                continue
            req = 0
            for h in hist:
                for p, d in h:
                    req = max(req, need(p, c) - d)
            if req > 0:
                nops += 1
                out.append(Ins(f"s_nop {req-1}"))
            adv = max(req, 0)
            nh = []
            for h in hist:
                h2 = [(p, d + adv + c.states) for p, d in h if d + adv + c.states < WIN]
                h2.append((c, 0))
                nh.append(h2)
            if len(nh) > 1:
                seen, m = set(), []
                for h in nh:
                    key = tuple((id(p), d) for p, d in h)
                    if key not in seen:
                        seen.add(key)
                        m.append(h)
                nh = m
            hist = nh
            out.append(c)
            if c.cls == "branch":
                pend.setdefault(c.target, []).extend([list(h) for h in hist])
                if c.op == "s_branch":
                    hist = [[]]
            if c.op == "s_endpgm":
                hist = [[]]
        self.nops = nops
        self.out = out
        return self.text(out)

    @staticmethod
    def text(out):
        return "\n".join(("" if (i.islabel or i.cls == "dir") else "    ") + i.text for i in out) + "\n"

    def sizes(self, out):
        import subprocess
        src = ".text\n" + self.text([i for i in out if i.cls != "dir"])
        open("_sz.s", "w").write(src)
        subprocess.run(["clang", "-x", "assembler", "-target", "amdgcn-amd-amdhsa", "-mcpu=gfx950", "-c", "_sz.s", "-o", "_sz.o"], check=True)
        d = subprocess.run(["llvm-objdump", "-d", "--mcpu=gfx950", "_sz.o"], capture_output=True, text=True).stdout
        sz = [len(m.group(1).split()) * 4 for m in re.finditer(r"// [0-9A-F]{12}: ((?:[0-9A-F]{8} ?)+)", d)]
        real = [i for i in out if i.cls not in ("dir", "label")]
        assert len(sz) == len(real), (len(sz), len(real))
        return {id(i): n for i, n in zip(real, sz)}

    def layout(self, align=True, pads=0, back="L_back"):
        out = self.out
        sz = self.sizes(out)
        PROMO = re.compile(r"^v_(mov_b32|add_f32|sub_f32|mul_f32|max_f32|min_f32|exp_f32|rcp_f32|rsq_f32|and_b32|or_b32|xor_b32|lshlrev_b32|lshrrev_b32|add_u32|sub_u32|max_u32|min_u32|cndmask_b32|mul_u32_u24|subrev_u32)$")
        res, addr, anchored, execfull, nxt, padpos = [], 0, False, True, 0, []
        started, force, step = False, False, 4096
        for idx, c in enumerate(out):
            if c.cls == "dir" and c.text.startswith(".x_"):
                if c.text == ".x_pad":
                    force = True
                else:
                    step = 1024 if c.text == ".x_dense" else 4096
                    nxt = -(-addr // step) * step
                continue
            if c.cls == "dir":
                if c.text.startswith(".p2align 12"):
                    addr, anchored, nxt = 0, True, 0
                elif c.text.startswith(".p2align"):
                    a = 1 << int(c.text.split()[1])
                    addr = -(-addr // a) * a
                res.append(c)
                continue
            if c.cls == "label":
                res.append(c)
                if c.text == back + ":":
                    started, nxt = True, -(-addr // step) * step
                continue
            if anchored and started and pads and (addr >= nxt or force) and execfull:
                if addr % 4096 >= 64 and nxt % 4096 == 0 and addr >= nxt:
                    print("warning: pad misses the first line of a page at", addr)
                lab = Ins(f"L_pad{len(padpos)}:")
                p = Ins("s_cbranch_execz X")
                sz[id(p)] = 4
                res += [lab, p]
                padpos.append(p)
                addr += 4
                force = False
                nxt = (addr // step + 1) * step
            b = sz[id(c)]
            if align and b == 8 and addr % 8 == 4:
                prev = next((r for r in reversed(res) if r.cls != "label"), None)
                if prev is not None and prev.cls == "valu" and sz[id(prev)] == 4 and PROMO.match(prev.op):
                    prev.text = prev.text.replace(prev.op, prev.op + "_e64", 1)
                    prev.op += "_e64"
                    sz[id(prev)] = 8
                    addr += 4
                else:
                    run = 0
                    for d in out[idx:idx + 40]:
                        if d.cls in ("label", "dir"):
                            continue
                        if sz[id(d)] != 8 or d.cls == "mfma":
                            break
                        run += 1
                    if run >= 5:
                        p = Ins("s_nop 0")
                        sz[id(p)] = 4
                        res.append(p)
                        addr += 4
            res.append(c)
            addr += b
            if ("s", "exec") in c.wr:
                execfull = c.text.replace(" ", "") == "s_mov_b64exec,-1"
            if c.op in ("s_branch", "s_endpgm"):
                execfull = getattr(c, "_x", True) and execfull
        self.starts = []
        if pads:
            m = len(padpos)
            cuts = [m * q // pads for q in range(pads + 1)]
            self.starts = cuts[:-1]
            for q, p in enumerate(padpos):
                p.text = f"s_cbranch_execz {back if (q + 1) in cuts[1:] else 'L_pad%d' % (q + 1)}"
        txt = self.text(res)
        for q, st in enumerate(self.starts):
            txt = txt.replace(f"L_CHAIN{q}", f"L_pad{st}")
        self.size = addr
        return txt


class VM:
    def __init__(self, k):
        self.k = k
        self.tags = []

    def issue(self, tag, text):
        self.k(text)
        self.tags.append(tag)

    def wait(self, *tags):
        last = -1
        for i, t in enumerate(self.tags):
            if t in tags:
                last = i
        assert last >= 0, tags
        n = len(self.tags) - 1 - last
        assert n <= 63
        self.k(f"s_waitcnt vmcnt({n})")

    def outstanding_check(self):
        pass

    def drain(self):
        self.k("s_waitcnt vmcnt(0)")
        self.tags = []
```

```python
import sys, struct
from asmfw import K, VM, Ins

NAME = "sequential_preLN__sliding_local_dilated__glu_gated_swiglu__prompt"
HDR = open(f"cdna_kernels/{NAME}.s.ref").read().split("; Override launch")[0]

GS = 2 << 20
OBUF = 0
HBUF = 786432
STAT2 = HBUF + 327680
EXPB = STAT2 + 40960
FLAGS = EXPB + 32 * 5376
OREM = FLAGS + 1024
CSB = 8 * GS
MID = 16384
TSB = 0x180000
XS = lambda s: s * 14336
W1S = lambda s: 57344 + s * 24576
MISC = 155648
STAT1 = MISC
PUREW = MISC + 896
STAT3 = MISC + 1024
OUTST = MISC + 3072
IMG, RS, PB = 53248, 496, 52 * 496 + 8
WOP = [106496 + 8192 * i for i in range(6)] + [8192 * i for i in range(4)]
A2B = 32768
A2L = [A2B + 12288 * (i % 6) for i in range(10)]
A4S = lambda s: 49152 + (s % 6) * 11264
CSL = MISC
HPART = 49152
W3S = [106496, 131072, 0, 24576]
A3S = lambda s: 49152 + s * 16384
W4P = [8192 * i for i in range(6)] + [122880 + 8192 * i for i in range(4)]
W4R = [65536, 73728, 98304, 81920, 90112, 106496]
OOB = 0x80000000
SPIN = 200000

f2u = lambda x: struct.unpack("<I", struct.pack("<f", x))[0]
LOG2E = 1.4426950408889634
QSCALE = (20 ** -0.5) * LOG2E

SX, SWQ, SWO, SW1, SW3, SW2, SOUT, SWS, SDBG = ("s[4:7]", "s[8:11]", "s[12:15]", "s[16:19]", "s[20:23]",
                                                "s[24:27]", "s[28:31]", "s[32:35]", "s[36:39]")
sW, sG, sR, sT, sJ, sJM, sLW, sSLOW = "s40", "s41", "s42", "s43", "s44", "s45", "s46", "s47"
sNP, sFLAG, sROW, sXCC = "s54", "s55", "s62", "s63"
SCS = "s[92:95]"
AUX = ("", " sc1", " nt", " sc0 sc1")


def vr(a, n=1):
    return f"v{a}" if n == 1 else f"v[{a}:{a+n-1}]"


def merge(a, b):
    g = []
    for x in a:
        if g and "exec" in g[-1][-1][1] and "exec" not in g[-1][-1][3]:
            g[-1].append(x)
        else:
            g.append([x])
    out, j = [], 0
    for i, x in enumerate(g):
        out += x
        while j < len(b) and (j + 1) * len(g) <= (i + 1) * (len(b) + 1):
            out.append(b[j])
            j += 1
    return out + b[j:]


def interleave(k, main, side, first=1, every=1):
    si = 0
    for i, m in enumerate(main):
        k(m)
        if i + 1 >= first and (i + 1 - first) % every == 0 and si < len(side):
            k(side[si])
            si += 1
    while si < len(side):
        k(side[si])
        si += 1


class Gen:
    def __init__(self, opt):
        self.o = opt
        self.k = K()
        self.nts = {"c": 0, "l": 0}

    def ts(self, n):
        if "pb" in self.o:
            if n == self.o.get("pa", -1):
                self.k("s_memrealtime s[100:101]\ns_waitcnt lgkmcnt(0)")
            if n == self.o["pb"]:
                self.k("s_memrealtime s[84:85]\ns_waitcnt lgkmcnt(0)")
        if not self.o.get("ts"):
            return
        if self.o["ts"] == 3 and n != 42:
            return
        if self.o["ts"] == 2 and n in (4, 5, 6, 7, 8, 9, 10, 28, 29, 30, 31, 32, 33, 34, 14, 20):
            return
        self.k(f"{'s_memrealtime' if self.o.get('rt') else 's_memtime'} s[84:85]\ns_waitcnt lgkmcnt(0)\nv_writelane_b32 v63, s84, {n}")

    def ts_flush(self):
        if "pb" in self.o:
            k = self.k
            k(f"s_cmp_lg_u32 {sW}, {self.o.get('pw', 0)}\ns_cbranch_scc1 L_end\ns_cmp_ge_u32 {sR}, 30\ns_cbranch_scc1 L_end")
            k("s_sub_u32 s48, s84, s100\ns_mul_i32 s48, s48, 10\ns_min_u32 s48, s48, 100000\ns_memrealtime s[100:101]\ns_waitcnt lgkmcnt(0)")
            k("L_spin:\ns_memrealtime s[84:85]\ns_waitcnt lgkmcnt(0)\ns_sub_u32 s49, s84, s100\ns_cmp_lt_u32 s49, s48\ns_cbranch_scc1 L_spin")
        if not self.o.get("ts"):
            return
        k = self.k
        k(f"s_memrealtime s[84:85]\ns_waitcnt lgkmcnt(0)\nv_writelane_b32 v63, s84, 62\nv_writelane_b32 v63, {sXCC}, 63")
        k(f"s_lshl_b32 s48, {sR}, 11\ns_lshl_b32 s49, {sW}, 8\ns_add_u32 s48, s48, s49\ns_add_u32 s48, s48, {TSB}")
        k(f"v_lshlrev_b32 v62, 2, v1\nbuffer_store_dword v63, v62, {SWS}, s48 offen")

    def capture(self, fn):
        real, out = self.k, []

        class Rec:
            def __call__(s_, t):
                out.append(t)
            lab = real.lab
        self.k = Rec()
        fn()
        self.k = real
        return out

    def signal(self, kind, byte_is_wave=True, younger=0, nowb=False, plus=0):
        k = self.k
        fast, done = k.lab("L_sigf"), k.lab("L_sigd")
        k("v_mov_b32 v60, 1")
        if byte_is_wave:
            k(f"s_add_u32 s48, {sFLAG}, {sW}")
        else:
            k(f"s_mov_b32 s48, {sFLAG}")
        k(f"s_cmp_eq_u32 {sSLOW}, 0")
        k("s_mov_b64 exec, 1")
        k(f"s_waitcnt vmcnt({younger})")
        k(f"s_cbranch_scc1 {fast}")
        if not nowb:
            k("buffer_wbl2 sc1\ns_waitcnt vmcnt(0)")
        k(f"buffer_store_byte v60, off, {SWS}, s48 offset:{kind*256 + plus} sc1")
        k(f"s_branch {done}")
        k(f"{fast}:")
        k(f"buffer_store_byte v60, off, {SWS}, s48 offset:{kind*256 + plus}")
        k(f"{done}:")
        k("s_mov_b64 exec, -1")

    def poll(self, kind, both, want=0x01010101, noinv=False, plus=0):
        k = self.k
        loop, out, done = k.lab("L_poll"), k.lab("L_pollo"), k.lab("L_polld")
        k(f"s_mov_b32 s48, 0\ns_mov_b32 s49, {want}")
        k(f"{loop}:")
        if both:
            k(f"buffer_load_dwordx2 v[58:59], v61, {SWS}, 0 offen offset:{kind*256} sc1")
        else:
            k(f"buffer_load_dword v58, v61, {SWS}, 0 offen offset:{kind*256 + plus} sc1")
        k(f"s_add_u32 s48, s48, 1\ns_cmp_gt_u32 s48, {SPIN}\ns_cbranch_scc1 {out}")
        k("s_waitcnt vmcnt(0)")
        if both:
            k("v_and_b32 v58, v58, v59")
        k("v_cmp_ne_u32 vcc, s49, v58")
        k(f"s_cbranch_vccnz {loop}")
        k(f"{out}:")
        if not noinv:
            k(f"s_cmp_eq_u32 {sSLOW}, 0\ns_cbranch_scc1 {done}")
            k("buffer_inv sc1\ns_waitcnt vmcnt(0)")
        k(f"{done}:")
        k("s_mov_b64 exec, -1")

    HELLO_LD = f"buffer_load_dword v43, off, {SDBG}, s83 sc1"

    def hello_check(self):
        k = self.k
        loop, ok = k.lab("L_hl"), k.lab("L_hok")
        k("s_mov_b32 s50, 0")
        k(f"{loop}:")
        k("v_readfirstlane_b32 s49, v43")
        k(f"s_add_u32 s50, s50, 1\ns_and_b32 s51, s49, 0xff\ns_cmp_eq_u32 s51, 32\ns_cbranch_scc1 {ok}")
        k(f"s_cmp_gt_u32 s50, {SPIN}\ns_cbranch_scc1 {ok}")
        k(self.HELLO_LD + "\ns_waitcnt vmcnt(0)")
        k(f"s_branch {loop}")
        k(f"{ok}:")
        k(f"s_mul_i32 s50, {sXCC}, {sXCC}\ns_lshl_b32 s50, s50, 16\ns_lshl_b32 s51, {sXCC}, 8\ns_add_u32 s50, s50, s51")
        k("s_add_u32 s50, s50, 1\ns_lshl_b32 s50, s50, 5")
        k(f"s_cmp_lg_u32 s50, s49\ns_cselect_b32 {sSLOW}, 1, 0")
        if self.o.get("force_slow"):
            k(f"s_mov_b32 {sSLOW}, 1")
        k(f"v_mov_b32 v43, {sSLOW}\nv_mov_b32 v60, {PUREW}\nds_write_b32 v60, v43")

    def read_pure(self):
        k = self.k
        k(f"v_mov_b32 v60, {PUREW}\nds_read_b32 v60, v60\ns_waitcnt lgkmcnt(0)\nv_readfirstlane_b32 {sSLOW}, v60")

    def prologue(self):
        k = self.k
        k("s_cmp_ge_u32 s2, 256\ns_cbranch_scc1 L_end")
        k("s_load_dwordx16 s[64:79], s[0:1], 0\ns_load_dwordx4 s[80:83], s[0:1], 64")
        if self.o.get("ts"):
            k("s_memrealtime s[86:87]\n" + ("s_memrealtime" if self.o.get("rt") else "s_memtime") + " s[84:85]")
        if "pb" in self.o:
            k("s_memrealtime s[100:101]\ns_memrealtime s[84:85]")
        k("v_lshrrev_b32 v1, 6, v0")
        if self.o.get("perm"):
            k(f"s_lshr_b32 {sG}, s2, 5\ns_and_b32 {sR}, s2, 31")
        else:
            k(f"s_and_b32 {sG}, s2, 7\ns_lshr_b32 {sR}, s2, 3")
        k(f"v_readfirstlane_b32 {sW}, v1")
        k("v_and_b32 v1, 63, v0\nv_lshrrev_b32 v3, 4, v1")
        if self.o.get("ctouch", 1):
            k(f"s_cmp_lg_u32 {sW}, 2\ns_cbranch_scc1 L_noct")
            k("s_getpc_b64 s[48:49]\nL_pc:")
            k(f"s_mul_i32 s50, {sR}, 13*128\nv_lshl_add_u32 v4, v1, 7, s50\nv_min_u32 v4, L_end-L_pc, v4\ns_bfm_b64 exec, 13, 0")
            k("global_load_dword v26, v4, s[48:49]\ns_mov_b64 exec, -1\nL_noct:")
        k(f"s_cmp_lt_u32 {sW}, 4\ns_cbranch_scc1 L_c0")
        k("s_mov_b32 s3, 1")
        k(f"s_cmp_ge_u32 {sR}, 30\ns_cbranch_scc1 L_h0")
        self.ids(0)

    def ids(self, part):
        k = self.k
        srd = lambda lst: [k(f"s_mov_b32 s{b+2}, {n}\ns_mov_b32 s{b+3}, 0x20000") for b, n in lst]
        if part in (0, 2):
            k(f"s_mul_i32 {sT}, {sR}, 26\ns_lshr_b32 {sT}, {sT}, 8\ns_mul_i32 s48, {sT}, 10\ns_sub_u32 {sJ}, {sR}, s48")
            if part == 2:
                k(f"s_cmp_ge_u32 {sR}, 30\ns_cselect_b32 {sT}, 0, {sT}")
            k(f"s_lshl_b32 {sROW}, {sG}, 8\ns_mul_i32 s48, {sT}, 88\ns_add_u32 {sROW}, {sROW}, s48")
            k(f"s_and_b32 s60, {sW}, 3\ns_lshl_b32 {sLW}, s60, 10")
            srd(((4, 2621440), (8, 2457600)))
        if part in (1, 2):
            k("v_and_b32 v2, 15, v0")
            k(f"s_sub_u32 s48, {sJ}, 5\ns_cmp_ge_u32 {sJ}, 5\ns_cselect_b32 {sJM}, s48, {sJ}")
            k(f"s_cmp_eq_u32 {sT}, 2\ns_cselect_b32 {sNP}, 40, 44")
            k(f"s_lshl_b32 {sFLAG}, {sR}, 3\ns_add_u32 {sFLAG}, {sFLAG}, {FLAGS}")
            k(f"s_getreg_b32 {sXCC}, hwreg(HW_REG_XCC_ID)\ns_and_b32 {sXCC}, {sXCC}, 7")
            k(f"s_mov_b32 {sSLOW}, 1\ns_lshl_b32 s61, {sG}, 21")
            srd(((12, 819200), (16, 1966080), (20, 1966080), (24, 1966080), (28, 2621440), (32, GS), (36, 256), (92, MID + 16 * 245760)))

    def srds(self, part):
        k = self.k
        if part:
            self.ids(part)
        if part in (0, 2):
            k("s_waitcnt lgkmcnt(0)")
            k("s_mov_b64 s[4:5], s[64:65]\ns_mov_b64 s[8:9], s[66:67]")
            if self.o.get("ts"):
                k("v_mov_b32 v63, 0\nv_writelane_b32 v63, s84, 0\nv_writelane_b32 v63, s86, 61")
        if part in (1, 2):
            for b, p in ((12, 68), (16, 72), (20, 74), (24, 76), (28, 78), (36, 80)):
                k(f"s_mov_b64 s[{b}:{b+1}], s[{p}:{p+1}]")
            k("s_add_u32 s32, s82, s61\ns_addc_u32 s33, s83, 0")
            k(f"s_add_u32 s92, s82, {CSB}\ns_addc_u32 s93, s83, 0\ns_lshl_b32 s83, {sG}, 5")

    def hello_word(self):
        self.k(f"s_mul_i32 s96, {sXCC}, {sXCC}\ns_lshl_b32 s96, s96, 16\ns_lshl_b32 s97, {sXCC}, 8\ns_add_u32 s96, s96, s97\ns_add_u32 s96, s96, 1\nv_mov_b32 v62, s96")

    def hello_send(self):
        self.k(f"s_mov_b64 exec, 1\nbuffer_atomic_add v62, off, {SDBG}, s83\ns_mov_b64 exec, -1")

    def comp_start(self):
        k = self.k
        k("L_h0:")
        self.srds(2)
        k("s_branch L_helper")
        k(".p2align 12")
        k("L_c0:")
        l3, lgo, nores, noct = k.lab("L_w3"), k.lab("L_go"), k.lab("L_nores"), k.lab("L_noct")
        self.srds(2)
        k(f"s_cmp_eq_u32 {sW}, 3\ns_cbranch_scc1 {l3}\ns_cmp_lg_u32 {sW}, 0\ns_cbranch_scc1 {lgo}")
        k(f"s_cmp_lt_u32 {sR}, 30\ns_cbranch_scc1 {lgo}")
        k(f"s_cmp_lg_u32 {sR}, 31\ns_cbranch_scc1 {nores}")
        k(f"v_mov_b32 v4, 0\nv_mov_b32 v5, 0\nv_mov_b32 v6, 0\nv_mov_b32 v7, 0\nv_lshlrev_b32 v8, 4, v1\ns_mov_b32 s48, {FLAGS}")
        k(f"buffer_store_dwordx4 v[4:7], v8, {SWS}, s48 offen sc1\ns_waitcnt vmcnt(0)")
        k(f"{nores}:")
        self.hello_word()
        self.hello_send()
        k(f"s_branch {lgo}")
        k(f"{l3}:")
        st = self.o.get("stouch", 2)
        if st & 1:
            k(f"s_mul_i32 s49, {sR}, 1280\ns_add_u32 s49, s49, {STAT2}\nv_lshlrev_b32 v4, 7, v1\ns_bfm_b64 exec, 10, 0")
            k(f"buffer_load_dword v12, v4, {SWS}, s49 offen")
        k(f"{lgo}:")
        k("s_mov_b64 exec, -1\ns_mov_b32 s3, 0")
        k(f"s_cmp_ge_u32 {sR}, 30\ns_cbranch_scc1 L_helper")

    def attn_setup(self):
        k = self.k
        ZP = IMG + 480
        k(f"s_lshr_b32 s65, {sW}, 2\ns_xor_b32 s64, {sW}, s65\ns_and_b32 s64, s64, 3")
        k(f"s_mul_i32 s66, {sJM}, 3\ns_add_u32 s66, s66, s64")
        k(f"s_mul_i32 s67, s66, 40\ns_lshl_b32 s48, {sJM}, 7\ns_sub_u32 s67, s67, s48\ns_add_u32 s67, s67, {IMG+16}")
        k(f"s_cmp_ge_u32 {sJ}, 5\ns_cselect_b32 s48, 16, 0\ns_add_u32 s66, s66, s48")
        k(f"s_mul_i32 s48, s65, {PB}\ns_add_u32 s67, s67, s48")
        k(f"s_cmp_lt_u32 {sJM}, 2\ns_cselect_b32 s48, 3, 0\ns_cmp_eq_u32 {sJM}, 2\ns_cselect_b32 s48, 9, s48\ns_cmp_lg_u32 s64, s48\ns_cselect_b32 s68, 1, 0")
        k(f"v_lshlrev_b32 v60, 2, v3\nv_and_b32 v59, 40, v1\nv_cmp_eq_u32 vcc, 8, v59\nv_add_u32 v59, 16, v60\nv_cndmask_b32 v60, v60, v59, vcc")
        k(f"v_sub_u32 v59, v2, v60\nv_mov_b32 v58, {f2u(-1e30):#x}")
        k(f"s_or_b32 s48, {sG}, {sT}\ns_cmp_eq_u32 s48, 0\ns_cselect_b32 s48, 8, 0")
        for r in range(4):
            k(f"v_add_u32 v57, {8-r}, v59\nv_cmp_gt_u32 vcc, 8, v57\nv_cndmask_b32 v{224+r}, v58, 0, vcc")
            k(f"v_add_u32 v57, {r}, v60\nv_cmp_gt_u32 vcc, s48, v57\nv_cndmask_b32 v{228+r}, v{224+r}, v58, vcc")
            k(f"v_mov_b32 v{236+r}, 0x3f803f80")
        k(f"s_movk_i32 s48, {RS}")
        k("v_mul_u32_u24 v57, s48, v2\nv_add_u32 v57, s67, v57\nv_lshl_add_u32 v240, v3, 3, v57\nv_add_u32 v241, 32, v57")
        k("v_add_u32 v56, 16, v2\nv_cmp_gt_u32 vcc, 8, v2\nv_cndmask_b32 v56, v2, v56, vcc")
        k("v_mul_u32_u24 v57, s48, v56\nv_add_u32 v57, s67, v57\nv_lshl_add_u32 v242, v3, 3, v57\nv_add_u32 v243, 32, v57")
        k("v_min_u32 v56, 19, v56\nv_mul_u32_u24 v57, s48, v56\nv_add_u32 v57, s67, v57\nv_lshl_add_u32 v244, v3, 3, v57\nv_add_u32 v245, 32, v57")
        k(f"v_mov_b32 v58, {ZP - 8*RS}\nv_cndmask_b32 v232, v58, v240, vcc\nv_cndmask_b32_e64 v234, v240, v58, vcc")
        k("v_cmp_gt_u32 vcc, 8, v1\nv_cndmask_b32 v233, v58, v241, vcc\nv_lshrrev_b32 v57, 3, v1\nv_cmp_eq_u32 vcc, 1, v57\nv_cndmask_b32 v235, v58, v241, vcc")
        k("v_lshrrev_b32 v57, 2, v1\nv_and_b32 v56, 3, v1")
        k("v_mul_u32_u24 v59, s48, v57\nv_add_u32 v59, s67, v59\nv_lshl_add_u32 v252, v56, 3, v59")
        k("v_min_u32 v57, 3, v57\nv_mul_u32_u24 v57, s48, v57\nv_add_u32 v57, s67, v57\nv_lshl_add_u32 v253, v56, 3, v57")
        k(f"v_mov_b32 v58, {ZP - 352}")
        for b in range(3):
            k(f"v_cmp_eq_u32 vcc, {b}, v56\nv_cndmask_b32 v{249+b}, v58, v59, vcc")
        k("v_cndmask_b32_e64 v254, v58, v57, vcc")
        k(f"s_lshl_b32 s49, s65, 3\ns_add_u32 s49, s49, {STAT1 + 128}\nv_lshl_add_u32 v255, v2, 4, s49")
        k(f"s_mul_i32 s49, {sT}, 88\ns_mul_i32 s50, {sNP}, s65\ns_add_u32 s49, s49, s50\ns_lshl_b32 s49, s49, 4")
        k("s_lshl_b32 s50, s66, 13\ns_add_u32 s49, s49, s50")
        if self.o.get("hov", 1):
            k(f"s_add_u32 s49, s49, {HBUF}")
        k("v_lshrrev_b32 v57, 1, v3\nv_lshlrev_b32 v57, 12, v57\nv_lshl_add_u32 v57, v2, 4, v57\nv_add_u32 v57, s49, v57")
        k(f"v_and_b32 v56, 1, v3\nv_lshl_add_u32 v246, v56, 8, v57\nv_mov_b32 v58, {OOB:#x}")
        k(f"s_sub_u32 s50, {sNP}, 32\nv_lshl_add_u32 v56, v56, 4, v2\nv_cmp_gt_u32 vcc, s50, v56\nv_cndmask_b32 v247, v58, v57, vcc")
        k(f"s_lshl_b32 s49, {sT}, 1\ns_add_u32 s49, s49, s65\ns_lshl_b32 s49, s49, 5\ns_add_u32 s49, s49, s66\ns_mul_i32 s49, s49, 384\ns_add_u32 s49, s49, {OREM}")
        k("v_lshl_add_u32 v57, v1, 3, s49\nv_cmp_gt_u32 vcc, 48, v1\nv_cndmask_b32 v248, v58, v57, vcc")

    def import_setup(self):
        k = self.k
        k(f"s_lshr_b32 s48, s60, 1\ns_and_b32 s49, s60, 1\ns_sub_u32 s50, {sJM}, s48\ns_sub_u32 s50, s50, 1\ns_cmp_lt_u32 s50, 2\ns_cselect_b32 s69, 1, 0")
        k(f"s_lshl_b32 s50, s48, 1\ns_add_u32 s50, s50, {sR}\ns_sub_u32 s50, s50, 1\ns_mul_i32 s50, s50, 5120\ns_add_u32 s50, s50, {EXPB}")
        k("v_lshl_add_u32 v57, v1, 1, s49\nv_lshl_add_u32 v38, v57, 4, s50")
        k("v_max_u32 v57, 16, v57\nv_subrev_u32 v57, 16, v57\nv_lshrrev_b32 v58, 5, v57\nv_lshlrev_b32 v58, 8, v58\nv_and_b32 v59, 15, v57")
        k("v_lshl_add_u32 v58, v59, 4, v58\nv_lshrrev_b32 v59, 1, v57\nv_and_b32 v59, 8, v59\ns_add_u32 s50, s50, 3584\nv_add3_u32 v40, v58, v59, s50")
        k(f"s_mul_i32 s50, s49, {PB}\ns_mul_i32 s51, s48, 144\ns_add_u32 s50, s50, s51\ns_add_u32 s50, s50, {IMG}\ns_movk_i32 s51, {RS}")
        k("v_mul_u32_u24 v39, s51, v1\nv_add_u32 v39, s50, v39")
        k(f"s_movk_i32 s51, {16*RS}\nv_mul_u32_u24 v41, s51, v1\nv_add_u32 v41, {IMG + 480}, v41")

    def do_import(self):
        k = self.k
        loop, out, skip = k.lab("L_imp"), k.lab("L_impo"), k.lab("L_imps")
        k("v_mov_b32 v26, 0\nv_mov_b32 v27, 0\ns_bfm_b64 exec, 4, 0\nds_write_b64 v41, v[26:27]\ns_mov_b64 exec, -1")
        k(f"s_cmp_eq_u32 s69, 0\ns_cbranch_scc1 {skip}")
        k("s_bfm_b64 exec, 52, 0\ns_mov_b32 s49, 0")
        k(f"{loop}:")
        for gg in range(2):
            k(f"buffer_load_dwordx4 {vr(64 + 4*gg, 4)}, v38, {SWS}, 0 offen offset:{gg*1792} sc1")
        for gg in range(2):
            k(f"buffer_load_dwordx2 {vr(72 + 2*gg, 2)}, v40, {SWS}, 0 offen offset:{gg*768} sc1")
        k(f"s_add_u32 s49, s49, 1\ns_cmp_gt_u32 s49, {SPIN}\ns_waitcnt vmcnt(3)")
        k("v_max3_u32 v76, v64, v65, v66\ns_waitcnt vmcnt(2)\nv_max3_u32 v77, v67, v68, v69\nv_max3_u32 v76, v76, v70, v71\ns_waitcnt vmcnt(1)\nv_max3_u32 v77, v77, v72, v73")
        k("s_waitcnt vmcnt(0)\nv_max3_u32 v76, v76, v74, v75\nv_max_u32 v76, v76, v77")
        k(f"s_cbranch_scc1 {out}\nv_cmp_eq_u32 vcc, -1, v76\ns_cbranch_vccnz {loop}")
        k(f"{out}:")
        k("ds_write2_b64 v39, v[72:73], v[74:75] offset0:0 offset1:1")
        k("ds_write2_b64 v39, v[64:65], v[68:69] offset0:20 offset1:21")
        k("ds_write2_b64 v39, v[66:67], v[70:71] offset0:40 offset1:41")
        k("s_mov_b64 exec, -1")
        k(f"{skip}:")

    def emit(self, vm, items, fill=()):
        k = self.k
        fill = list(fill)
        n = len(items)
        for i, (tag, pre, ld, post) in enumerate(items):
            k(pre)
            if self.o.get("nold") and " lds" in ld:
                ld = "s_nop 0"
            vm.issue(tag, ld)
            k(post)
            take = -(-len(fill) // (n - i))
            for f in fill[:take]:
                k(f)
            fill = fill[take:]
        for f in fill:
            k(f)

    def it_p1(self, i):
        s, tag, it = i % 4, ("p1", i), []
        xa = AUX[self.o.get("xaux0", 2) if (i == 0 and self.o.get("rot", 1) in (1, 2, 3)) else 0]
        pre = (f"s_bfe_u32 s59, s89, {(3 << 16) | (3 * i):#x}\ns_add_u32 s59, s59, s88\ns_add_u32 s59, s59, {i}\n"
               "s_mul_i32 s56, s59, 26\ns_lshr_b32 s56, s56, 8\ns_mul_i32 s56, s56, 10\ns_sub_u32 s59, s59, s56\n"
               "s_lshl_b32 s56, s59, 7\ns_mul_i32 s57, s59, 245760\ns_add_u32 s58, s57, 122880\n")
        for hf in range(2):
            for mat in range(3):
                it.append((tag, pre + f"s_add_u32 m0, {sLW}, {W1S(s) + mat*8192 + hf*4096 - mat*1280}",
                           f"buffer_load_dwordx4 v10, {SWQ}, s{57+hf} offen offset:{mat*1280} lds", ""))
                pre = ""
        xi = [(tag, f"s_add_u32 m0, {sLW}, {XS(s) + q*4096}", f"buffer_load_dwordx4 v{6+q}, {SX}, s56 offen{xa} lds", "") for q in range(3)]
        xi.append((tag, f"s_mov_b32 m0, {XS(s) + 12288}\ns_mov_b64 exec, s[52:53]",
                   f"buffer_load_dwordx4 v9, {SX}, s56 offen{xa} lds", "s_mov_b64 exec, -1"))
        if self.o.get("mix1", 1):
            it = [it[0], xi[0], it[1], it[2], xi[1], it[3], it[4], xi[2], it[5], xi[3]]
        else:
            it = it[:3] + xi + it[3:]
        return it

    def it_wo(self, p):
        it = []
        if p >= self.o.get("x_wo", 99):
            return [(("wo", p), "s_mov_b64 exec, 1", f"buffer_load_dword v23, off, {SDBG}, 0", "s_mov_b64 exec, -1")]
        for hf in range(2):
            ks = 2 * p + hf
            if ks < 16:
                so, v = f"s_add_u32 s56, s73, {40*ks*1280}", 12
            else:
                so, v = f"s_add_u32 s56, s74, {160*(ks-16)*1280}", 55
            it.append((("wo", p), so + f"\ns_add_u32 m0, {sLW}, {WOP[p] + hf*4096}", f"buffer_load_dwordx4 v{v}, {SWO}, s56 offen lds", ""))
        return it

    def ld_lane_basics(self):
        k = self.k
        k("v_lshrrev_b32 v4, 3, v1\nv_and_b32 v5, 7, v1")
        k("s_and_b32 s48, s60, 1\ns_lshl_b32 s48, s48, 2")
        k(f"v_and_b32 v57, 1, v3\nv_lshlrev_b32 v57, 1, v57\nv_or_b32 v57, s48, v57\nv_xor_b32 v42, v57, v5")
        k(f"s_lshl_b32 s49, {sJ}, 7\nv_lshl_add_u32 v13, v42, 4, s49")

    def ld_setup_w(self):
        k = self.k
        k("v_lshrrev_b32 v57, 5, v1\nv_and_b32 v56, 3, v4\ns_movk_i32 s49, 1280")
        k("v_mad_u32_u24 v12, v4, s49, v13")
        k("s_movk_i32 s48, 80\nv_mad_u32_u24 v58, v57, s48, v56\nv_mad_u32_u24 v55, v58, s49, v13")
        k("v_lshl_add_u32 v58, v57, 4, v56\nv_mad_u32_u24 v14, v58, s49, v13")
        k("s_lshr_b32 s48, s60, 1\ns_mul_i32 s73, s48, 25600\ns_and_b32 s48, s60, 1\ns_mul_i32 s48, s48, 10240\ns_add_u32 s73, s73, s48")
        k("s_mul_i32 s74, s60, 25600\ns_add_u32 s74, s74, 20480")
        k("s_mul_i32 s80, s60, 5120\ns_mul_i32 s81, s60, 10240")
        k("s_mul_i32 s75, s60, 2816\ns_bfm_b64 s[76:77], 48, 0")

    def ld_setup_rest(self):
        k = self.k
        k(f"s_mul_i32 s48, {sT}, 88\ns_lshl_b32 s49, s60, 8\ns_add_u32 s48, s48, s49\ns_lshl_b32 s48, s48, 4")
        k("v_lshl_add_u32 v15, v1, 4, s48")
        k(f"v_add_u32 v16, 1024, v15\nv_add_u32 v57, {16384 - 88*16}, v16\nv_cmp_gt_u32 vcc, 24, v1\nv_cndmask_b32 v16, v57, v16, vcc")
        k(f"v_add_u32 v17, {2048 + 16384 - 88*16}, v15")
        k(f"s_lshl_b32 s48, {sT}, 1\ns_lshr_b32 s49, s60, 1\ns_add_u32 s48, s48, s49\ns_mul_i32 s48, s48, 12288\ns_and_b32 s49, s60, 1\ns_mul_i32 s49, s49, 3072")
        k(f"s_add_u32 s48, s48, s49\ns_add_u32 s48, s48, {OREM}\nv_lshl_add_u32 v54, v1, 4, s48")
        k(f"s_and_b32 s48, {sR}, 15\ns_and_b32 s49, s48, 1\ns_mul_i32 s50, s48, 192\ns_lshl_b32 s51, s49, 6\ns_add_u32 s51, s51, s50")
        k("v_lshrrev_b32 v57, 5, v1\nv_and_b32 v56, 3, v4\nv_lshl_add_u32 v58, v57, 4, v56\nv_mul_u32_u24 v59, 3072, v58")
        k("v_lshl_add_u32 v45, v42, 4, v59\nv_add_u32 v45, s51, v45")
        k("s_xor_b32 s49, s49, 1\ns_lshl_b32 s49, s49, 7\ns_add_u32 s50, s50, s49\nv_and_b32 v57, 3, v42\nv_lshl_add_u32 v47, v57, 4, v59\nv_add_u32 v47, s50, v47")
        k(f"s_mul_i32 s48, s48, 245760\ns_add_u32 s48, s48, {MID}\nv_mul_u32_u24 v58, 384, v58\nv_lshl_add_u32 v46, v42, 4, v58\nv_add_u32 v46, s48, v46")
        k("s_mul_i32 s70, s60, 12288\ns_mul_i32 s71, s60, 1536")
        k("s_and_b32 s48, s60, 1\ns_lshl_b32 s48, s48, 2\ns_lshl_b32 s86, 0x0f0f0f0f, s48\ns_mov_b32 s87, s86")
        k("s_mul_i32 s78, s60, 3072")
        k(f"s_lshr_b32 s48, {sR}, 4\ns_lshl_b32 s49, s48, 11\ns_lshl_b32 s50, s60, 12\ns_add_u32 s49, s49, s50\ns_add_u32 s49, s49, {HBUF}")
        k("v_lshl_add_u32 v48, v1, 4, s49")
        k("s_lshl_b32 s79, s60, 11")
        k(f"s_lshl_b32 s49, s48, 10\ns_lshl_b32 s50, s60, 8\ns_add_u32 s49, s49, s50\ns_add_u32 s49, s49, {STAT2}")
        k("v_and_b32 v57, 31, v1\nv_lshrrev_b32 v58, 5, v1\nv_lshlrev_b32 v58, 11, v58\nv_lshl_add_u32 v49, v57, 3, v58\nv_add_u32 v49, s49, v49")
        k(f"s_lshl_b32 s49, s60, 9\ns_add_u32 s49, s49, {STAT3}\nv_lshl_add_u32 v50, v57, 4, s49")
        k(f"s_and_b32 s48, {sR}, 15\ns_mul_i32 s48, s48, 384\nv_lshl_add_u32 v11, v1, 4, s48\nv_add_u32 v57, {6144 - 384}, v11\nv_cmp_gt_u32 vcc, 24, v1\nv_cndmask_b32 v11, v57, v11, vcc")
        k(f"v_lshlrev_b32 v61, 3, v1\nv_add_u32 v61, {FLAGS}, v61")

    def loader_p1(self):
        k = self.k
        vm = VM(k)
        k("L_ld0:")
        if self.o.get("prio", 1):
            k("s_setprio 2")
        self.ld_lane_basics()
        k(f"s_lshl_b32 s49, s60, 3\ns_add_u32 s56, {sROW}, s49\ns_sub_u32 s56, s56, 16")
        k("v_add_u32 v57, s56, v4\ns_movk_i32 s57, 1280\nv_mul_lo_u32 v57, v57, s57")
        k("v_or_b32 v58, s48, v3\nv_xor_b32 v58, v58, v5\nv_lshl_add_u32 v6, v58, 4, v57")
        k(f"v_add_u32 v7, {32*1280}, v6\nv_add_u32 v8, {64*1280}, v6")
        k(f"s_add_u32 s56, {sROW}, 80\nv_add_u32 v57, s56, v4\nv_mul_lo_u32 v57, v57, s57")
        k("v_xor_b32 v58, v3, v5\nv_lshl_add_u32 v9, v58, 4, v57")
        k("v_add_u32 v57, s49, v4\ns_movk_i32 s57, 3840\nv_mad_u32_u24 v10, v57, s57, v13")
        k("s_lshl_b32 s49, s60, 4\ns_bfm_b64 s[52:53], 16, s49")
        rot = self.o.get("rot", 1)
        k(f"s_mul_i32 s88, {sG}, 10\ns_lshr_b32 s88, s88, 3\ns_add_u32 s88, s88, 8")
        if rot in (1, 2, 3):
            k(f"s_add_u32 s88, s88, {sJ}")
        wins = ([[0, 1, 2], [3, 4, 5], [6, 7, 8], [9]], [[0, 1, 2], [3], [4, 5, 6], [7, 8, 9]], [[0, 1, 2], [3], [4], [5, 6, 7], [8, 9]])
        if rot == 3:
            wins = ([[0, 1, 2]] + [[q] for q in range(3, 10)],) * 3
        k(f"s_mov_b32 s89, {sum(2 << (3*i) for i in range(10)):#x}")
        if rot in (2, 3):
            k(f"s_mul_i32 s56, {sJ}, 22\ns_lshr_b32 s56, s56, 6\ns_mul_i32 s56, s56, 3\ns_sub_u32 s56, {sJ}, s56\ns_mul_i32 s56, s56, 3\ns_add_u32 s56, s56, {sT}")
            for ph in range(3):
                for t in range(1, 3):
                    order = [w[(t + q) % len(w)] for w in wins[ph] for q in range(len(w))]
                    word = sum((order[i] - i + 2) << (3 * i) for i in range(10))
                    k(f"s_cmp_eq_u32 s56, {3*ph + t}\ns_cselect_b32 s89, {word:#x}, s89")
        if rot in (0, 4):
          k(f"s_mul_i32 s49, s60, 26\ns_add_u32 s49, s49, {sROW}\ns_sub_u32 s49, s49, 16\nv_add_u32 v57, s49, v1\ns_movk_i32 s57, 1280\nv_mul_lo_u32 v22, v57, s57\ns_lshl_b32 s49, {sJ}, 7")
        if rot == 4:
            k(f"s_sub_u32 s56, s88, 8\ns_mul_i32 s56, s56, 1920\ns_lshl_b32 s57, {sR}, 2\ns_add_u32 s57, s57, s60\ns_lshl_b32 s58, s57, 4\ns_add_u32 s56, s56, s58")
            k(f"s_and_b32 s58, {sG}, 3\ns_mul_i32 s58, s58, 120\ns_add_u32 s57, s57, s58\ns_lshl_b32 s57, s57, 2\ns_lshr_b32 s58, {sG}, 2\ns_mul_i32 s58, s58, 9600\ns_add_u32 s57, s57, s58\ns_add_u32 s57, s57, {4*1920 - 16}")
            k("v_add_u32 v57, s56, v1\nv_add_u32 v58, s57, v1\nv_cmp_gt_u32 vcc, 16, v1\nv_cndmask_b32 v57, v58, v57, vcc\nv_lshlrev_b32 v21, 7, v57")
        self.srds(0)
        self.ts(50)
        if self.o.get("lat0"):
            k("s_mov_b64 exec, 1")
            for n_, (v_, srd_, off_) in enumerate(((7, SX, 0), (10, SWQ, 0), (7, SX, 256), (10, SWQ, 1280), (8, SX, 512))):
                k(f"buffer_load_dword v23, v{v_}, {srd_}, 0 offen offset:{off_}\ns_waitcnt vmcnt(0)")
                self.ts(51 + n_)
            k("s_mov_b64 exec, -1")
        xt = [("xt", "s_bfm_b64 exec, 26, 0", f"buffer_load_dword v23, v22, {SX}, s49 offen" + AUX[self.o.get("xtaux", 2)], "s_mov_b64 exec, -1")]
        xtouch = self.o.get("xtouch", 0 if rot else 2)
        if rot == 4:
            self.emit(vm, [("xt", "s_bfm_b64 exec, 20, 0", f"buffer_load_dword v23, v21, {SWQ}, 0 offen", "")] + xt + self.it_p1(0)[:self.o.get("pre0", 2)])
        else:
            self.emit(vm, (xt if xtouch == 1 else []) + self.it_p1(0) + (xt if xtouch == 2 else []))
        self.ts(1)
        self.srds(1)
        k(f"s_mul_i32 s48, {sR}, 5120\ns_mul_i32 s49, s60, 1280\ns_add_u32 s48, s48, s49\ns_add_u32 s48, s48, {EXPB}\nv_lshl_add_u32 v25, v1, 4, s48")
        nsp = self.o.get("sp1", 32)
        k(f"s_mul_i32 s48, {sG}, 30\ns_add_u32 s48, s48, {sR}\ns_lshl_b32 s48, s48, 1\ns_and_b32 s49, s60, 1\ns_add_u32 s48, s48, s49\ns_lshl_b32 s48, s48, 7")
        k(f"s_add_u32 s48, s48, {1966080 - (nsp//2 - nsp//4)*61440}\ns_cmp_lt_u32 s60, 2\ns_cselect_b32 s98, s16, s20\ns_cselect_b32 s99, s17, s21\ns_add_u32 s98, s98, s48\ns_addc_u32 s99, s99, 0")
        spf = [f"s_load_dword s91, s[98:99], {n*61440}\ns_load_dword s91, s[98:99], {n*61440 + 64}" for n in range(-(nsp // 4), nsp // 2 - nsp // 4)]
        k("v_mov_b32 v92, -1\nv_mov_b32 v93, -1\nv_mov_b32 v94, -1\nv_mov_b32 v95, -1")
        sn = [("sn", "", f"buffer_store_dwordx4 v[92:95], v25, {SWS}, 0 offen sc1", ""),
              ("sn", "s_bfm_b64 exec, 16, 0", f"buffer_store_dwordx4 v[92:95], v25, {SWS}, 0 offen offset:1024 sc1", "s_mov_b64 exec, -1")]

        def late_setup():
            k = self.k
            self.ld_setup_w()
            self.attn_setup()
            self.import_setup()
            self.ld_setup_rest()
        setup = self.capture(late_setup)
        npre = self.o.get("setup0", 30)
        for g in setup[:npre]:
            k(g)
        setup = setup[npre:]
        la = self.o.get("la1", 1)
        la0 = self.o.get("la10", 10)
        if rot == 4:
            self.emit(vm, self.it_p1(0)[self.o.get("pre0", 2):])
        pend = []
        for i in range(1, la + 1):
            pend += self.it_p1(i)
        k("s_branch L_ldloop")
        yield
        k("L_ldloop:\n.x_pad")
        self.emit(vm, pend[:la0])
        pend = pend[la0:]
        woa, wob = self.o.get("woa", 4), self.o.get("wob", 7)
        for i in range(10):
            vm.wait(*([("p1", i)] + (["sn"] if i == 2 else [])))
            k("s_barrier")
            if i == 0 or not nsp:
                self.ts(2 + i)
            items = pend + (self.it_p1(i + la + 1) if i + la + 1 <= 9 else [])
            pend = []
            if i == 0:
                items = sn + items
            if i == 7:
                items = [("hl", "", self.HELLO_LD, "")] + items
            if i == 8:
                for p in range(woa):
                    items += self.it_wo(p)
            take = -(-len(setup) // (8 - i)) if i < 8 else 0
            mid, setup = setup[:take], setup[take:]
            take = -(-len(spf) // (8 - i)) if i < 8 else 0
            sp, spf = spf[:take], spf[take:]
            for q, x in enumerate(sp):
                mid.insert(q * (len(mid) + 1) // len(sp), x)
            self.emit(vm, items, mid)
        assert not setup
        vm.wait("hl")
        self.hello_check()
        for p in range(woa, wob):
            self.emit(vm, self.it_wo(p))
        k("s_waitcnt lgkmcnt(0)\ns_barrier")
        self.ts(12)
        self.do_import()
        self.ts(17)
        k("s_setprio 0")
        k("s_branch L_attn")

    def ld_attn_mid(self):
        k = self.k
        vm = VM(k)
        for p in range(self.o.get("wob", 7), 10):
            self.emit(vm, self.it_wo(p))
        return len(vm.tags)

    def it_act88(self, tag, s, base, buf=OBUF):
        it = []
        for i in range(3):
            pre = (f"s_mov_b32 s56, {buf + s*32768}\n" if i == 0 else "") + f"s_add_u32 m0, s75, {base + i*1024}"
            if i == 2:
                pre += "\ns_mov_b64 exec, s[76:77]"
            it.append((tag, pre, f"buffer_load_dwordx4 v{15+i}, {SWS}, s56 offen sc1 lds", "s_mov_b64 exec, -1" if i == 2 else ""))
        return it

    def it_a2(self, s):
        if s < 8:
            return self.it_act88(("a2", s), s, A2L[s], HBUF if self.o.get("hov", 1) else OBUF)
        return [(("a2", s), (f"s_mov_b32 s56, {(s-8)*6144}\ns_add_u32 m0, s78, {A2L[s]}" if i == 0 else ""),
                 f"buffer_load_dwordx4 v54, {SWS}, s56 offen offset:{i*1024} sc1 lds", "") for i in range(3)]

    def it_w3(self, i):
        it, tag = [], ("w3", i)
        if self.o.get("x_w3a", 0) <= i < self.o.get("x_w3b", 0):
            return [(tag, "s_mov_b64 exec, 1", f"buffer_load_dword v9, v61, {SWS}, 0 offen", "s_mov_b64 exec, -1")]
        for hf in range(2):
            base = W3S[i % 4] + hf * 4096
            if i >= self.o.get("mid0", 4) and self.o.get("pk", 1):
                for q in range(3):
                    it.append((tag, (f"s_add_u32 s58, s71, {(64*i + 32*hf)*384}\n" if q == 0 else "") + f"s_add_u32 m0, {sLW}, {base + q*8192 - q*128}",
                               f"buffer_load_dwordx4 v46, {SCS}, s58 offen offset:{q*128} sc1 lds", ""))
                continue
            it.append((tag, f"s_add_u32 s57, s70, {(64*i + 32*hf)*3072}\ns_add_u32 m0, {sLW}, {base}", f"buffer_load_dwordx4 v45, {SW1}, s57 offen{AUX[self.o.get('w3aux', 0)]} lds", ""))
            it.append((tag, f"s_add_u32 m0, {sLW}, {base + 8192}", f"buffer_load_dwordx4 v45, {SW3}, s57 offen{AUX[self.o.get('w3aux', 0)]} lds", ""))
            if i >= self.o.get("mid0", 4):
                it.append((tag, f"s_add_u32 s58, s71, {(64*i + 32*hf)*384 + 256}\ns_add_u32 m0, {sLW}, {base + 16384}",
                           f"buffer_load_dwordx4 v46, {SCS}, s58 offen sc1 lds", ""))
            else:
                it.append((tag, f"s_add_u32 m0, {sLW}, {base + 16384}\ns_mov_b64 exec, s[86:87]", f"buffer_load_dwordx4 v47, {SW1}, s57 offen lds", ""))
                it.append((tag, "s_not_b64 exec, s[86:87]", f"buffer_load_dwordx4 v47, {SW3}, s57 offen lds", "s_mov_b64 exec, -1"))
        return it

    def it_a3(self, i):
        it = []
        if self.o.get("x_noa3") and i >= 2:
            return [(("a3", i), "s_mov_b64 exec, 1", f"buffer_load_dword v9, v48, {SWS}, 0 offen", "s_mov_b64 exec, -1")]
        for ksub in range(2):
            for q in range(2):
                pre = (f"s_mov_b32 s56, {(2*i + ksub)*16384}\n" if q == 0 else "") + f"s_add_u32 m0, s79, {A3S(i % 3) + ksub*8192}"
                it.append((("a3", i), pre, f"buffer_load_dwordx4 v48, {SWS}, s56 offen offset:{q*1024} sc1 lds", ""))
        return it

    def w4slot(self, p):
        ns = self.o.get("ns", 6)
        return W4R[p] if p < ns else W4P[(p - ns) % 10]

    def it_w4(self, p):
        it = []
        if self.o.get("x_w4a", 0) <= p < self.o.get("x_w4b", 0):
            return [(("w4", p), "s_mov_b64 exec, 1", f"buffer_load_dword v9, v61, {SWS}, 0 offen", "s_mov_b64 exec, -1")]
        for hf in range(2):
            ks = 2 * p + hf
            sb, v = ("s81", 12) if ks % 6 in (2, 3) else ("s80", 14)
            it.append((("w4", p), f"s_add_u32 s57, {sb}, {32*ks*1280}\ns_add_u32 m0, {sLW}, {self.w4slot(p) + hf*4096}",
                       f"buffer_load_dwordx4 v{v}, {SW2}, s57 offen lds", ""))
        return it

    def ld_poll(self, kind, both, maskcode):
        k = self.k
        skip = k.lab("L_np")
        k(f"s_cmp_lg_u32 {sW}, 4\ns_cbranch_scc1 {skip}")
        k(maskcode)
        self.poll(kind, both)
        k(f"{skip}:")
        k("s_barrier")

    def w2_pref_setup(self):
        self.k(f"s_lshl_b32 s48, s2, 2\ns_add_u32 s48, s48, s60\ns_mul_i32 s48, s48, 1920\ns_add_u32 s98, s24, s48\ns_addc_u32 s99, s25, 0")

    def w2_pref(self, a, b):
        if self.o.get("w2s", 1) and not self.o.get("x_now2"):
            for n in range(a, min(b, 30)):
                self.k(f"s_load_dword s96, s[98:99], {64*n}")

    def tsl(self, n):
        if not self.o.get("w2s", 1) or n >= 36:
            self.ts(n)

    def loader_rest(self):
        k = self.k
        vm = VM(k)
        E = lambda items, fill=(): self.emit(vm, items, fill)
        k("L_ld_p2:\n.x_pad")
        if self.o.get("prio", 1):
            k("s_setprio 2")
        if self.o.get("stouch", 2) == 2:
            k(f"s_lshl_b32 s48, {sR}, 2\ns_add_u32 s48, s48, s60\ns_mul_i32 s48, s48, 192\ns_add_u32 s48, s48, {STAT2}\ns_add_u32 s98, s32, s48\ns_addc_u32 s99, s33, 0")
            for n in range(3):
                k(f"s_load_dword s96, s[98:99], {64*n}")
        hov = self.o.get("hov", 1)
        if hov:
            k(f"s_lshl_b32 s48, {sR}, 2\ns_add_u32 s48, s48, s60\ns_mul_i32 s48, s48, 576\ns_add_u32 s48, s48, {HBUF + 16*16384}\ns_add_u32 s98, s32, s48\ns_addc_u32 s99, s33, 0")
            for n in range(9):
                k(f"s_load_dword s96, s[98:99], {64*n}")
        self.w2_pref_setup()
        p0, n2, n3 = self.o.get("w2p0", 0 if hov else 6), self.o.get("w2n2", 10), self.o.get("w2n3", 6)
        self.w2_pref(0, p0)
        k("s_waitcnt vmcnt(0)")
        self.ld_poll(1, True, f"s_mul_i32 s48, {sT}, 10\ns_bfm_b64 exec, 10, s48")
        self.tsl(21)
        la = self.o.get("la2", 3)
        w3at = self.o.get("w3at", 8)
        w3a, w3b = self.o.get("w3a", 2), self.o.get("w3b", 3)
        wq = [x for i in range(10) for x in self.it_w3(i)]
        assert self.o.get("mid0", 4) * 2 >= w3b and (w3a <= 2 or w3at >= 8) and w3a <= 4 and w3at >= 5
        nxt = 0
        for i in range(10):
            while nxt <= min(9, i + la) and nxt <= max(5, i + 3):
                E(self.it_a2(nxt))
                nxt += 1
            if i == w3at:
                E(wq[:4 * w3a])
            self.w2_pref(p0 + n2 * i // 10, p0 + n2 * (i + 1) // 10)
            vm.wait(("a2", i))
            k("s_barrier")
            if i == 7 and hov:
                sk = k.lab("L_rd")
                k(f"s_cmp_lg_u32 {sW}, 5\ns_cbranch_scc1 {sk}")
                self.signal(0, byte_is_wave=False, younger=63, nowb=True)
                k(f"{sk}:")
            if i in (0, 9):
                self.tsl(22 + (i == 9))
        if hov:
            sk = k.lab("L_rp")
            k(f"s_cmp_lg_u32 {sW}, 4\ns_cbranch_scc1 {sk}\ns_mul_i32 s48, {sT}, 10\ns_bfm_b64 exec, 10, s48")
            self.poll(0, False, want=1, noinv=True)
            k(f"{sk}:")
        k("s_barrier")
        if self.o.get("hook2", 1) == 0:
            k("s_barrier")
            E(wq[4 * w3a:4 * w3b])
            k("s_barrier")
        else:
            k("s_barrier")
            E(wq[4 * w3a:4 * w3b])
        wq = wq[4 * w3b:]
        self.w2_pref(p0 + n2, p0 + n2 + n3)
        k("L_ld_p3:")
        self.tsl(24)
        self.ld_poll(2, False, f"s_lshr_b32 s48, {sR}, 4\ns_mul_i32 s48, s48, 10\ns_bfm_b64 exec, 20, s48")
        self.tsl(25)
        ns = self.o.get("ns", 6)
        todo4 = list(range(24))
        free_at = lambda a: 8 if (a < 49152 or 65536 <= a < 81920 or a == 98304) else (9 if a < 131072 else 10)

        def w4issue(upto, bar):
            for p in list(todo4):
                if 24 - len(todo4) < upto and p < ns + 10 and free_at(self.w4slot(p)) <= bar:
                    E(self.it_w4(p))
                    todo4.remove(p)
        na = 0
        law = self.o.get("la3w", 1)
        mid0 = self.o.get("mid0", 4)
        csat = max(1, min(3, mid0 - law))
        for i in range(10):
            if i == csat:
                vm.wait("csf")
                lp, ok = k.lab("L_csl"), k.lab("L_csok")
                k(f"s_mov_b32 s49, 0\n{lp}:\nv_readfirstlane_b32 s48, v7\ns_add_u32 s49, s49, 1\ns_cmp_eq_u32 s48, 48\ns_cbranch_scc1 {ok}")
                k(f"s_cmp_gt_u32 s49, {SPIN}\ns_cbranch_scc1 {ok}\nbuffer_load_dword v7, off, {SDBG}, 0 offset:16 sc1\ns_waitcnt vmcnt(0)\ns_branch {lp}\n{ok}:")
                k(f"s_mov_b32 m0, {CSL}\ns_mov_b64 exec, s[76:77]")
                vm.issue("cs", f"buffer_load_dwordx4 v11, {SCS}, 0 offen sc1 lds")
                k("s_mov_b64 exec, -1")
            if i == 1:
                k(f"s_lshr_b32 s48, {sR}, 4\ns_mul_i32 s48, s48, 10\ns_bfm_b64 s[52:53], 20, s48\ns_mov_b64 exec, s[52:53]")
                vm.issue("stf", f"buffer_load_dword v8, v61, {SWS}, 0 offen offset:{2*256 + 4} sc1")
                k("s_mov_b64 exec, -1")
            if i == 3:
                vm.wait("stf")
                ok = k.lab("L_stok")
                k(f"s_mov_b64 exec, s[52:53]\nv_cmp_ne_u32 vcc, 0x10001, v8\ns_or_b32 s48, vcc_lo, {sSLOW}\ns_mov_b64 exec, -1\ns_cbranch_scc0 {ok}\ns_mov_b64 exec, s[52:53]")
                self.poll(2, False, want=0x10001, plus=4)
                k(f"{ok}:")
            if i == max(0, csat - 2):
                vm.issue("csf", f"buffer_load_dword v7, off, {SDBG}, 0 offset:16 sc1")
            ia, iw = [], []
            while na <= min(9, i + 1):
                ia += self.it_a3(na)
                na += 1
            while wq and wq[0][0][1] <= i + law:
                nw = wq[0][0][1]
                assert nw <= max(3, i + 2) and (nw < mid0 or i >= csat)
                iw.append(wq.pop(0))
            if 3 <= i <= 6 and not self.o.get("x_nost"):
                ia = merge(ia, [("st", f"s_mov_b32 s59, {q*4096}", f"buffer_load_dwordx2 v[{20+2*q}:{21+2*q}], v49, {SWS}, s59 offen sc1", "")
                                for q in ((0,), (1,), (2,), (3, 4))[i - 3]])
            if i == 0:
                now = [x for x in iw if x[0][1] == 0]
                E(ia[:4] + now)
                ia, iw = ia[4:], iw[len(now):]
                if self.o.get("la30", 1) == 0:
                    vm.wait(("a3", 0), ("w3", 0))
                    k("s_barrier")
            E(merge(iw, ia) if iw else ia)
            d3 = p0 + n2 + n3
            if i < 7:
                self.w2_pref(d3 + (30 - d3) * i // 7, d3 + (30 - d3) * (i + 1) // 7)
            if i == self.o.get("hhpt", -1):
                k(f"s_lshl_b32 s48, {sR}, 2\ns_add_u32 s48, s48, s60\ns_mul_i32 s48, s48, 6144\nv_lshlrev_b32 v8, 7, v1\ns_mov_b64 exec, s[76:77]")
                vm.issue("pt", f"buffer_load_dword v9, v8, {SWS}, s48 offen")
                k("s_mov_b64 exec, -1")
            if i == 8 and not self.o.get("x_nost"):
                vm.wait("st")
                for q in range(1, 5):
                    k(f"v_add_f32 v20, v20, v{20+2*q}\nv_add_f32 v21, v21, v{21+2*q}")
                k("v_mov_b32 v22, v20\nv_mov_b32 v23, v21")
                k("v_permlane32_swap_b32 v22, v20\nv_permlane32_swap_b32 v23, v21")
                k(f"s_mov_b32 s48, {f2u(1.0/640):#x}\ns_mov_b32 s49, {f2u(1e-5):#x}")
                k("v_add_f32 v20, v20, v22\nv_add_f32 v21, v21, v23")
                k("v_mul_f32 v20, s48, v20\nv_mul_f32 v21, s48, v21")
                k("v_fma_f32 v21, -v20, v20, v21\nv_max_f32 v21, 0, v21\nv_add_f32 v26, s49, v21")
                k(f"v_rsq_f32 v25, v26\nv_sub_f32 v24, 0, v20\nv_mov_b32 v27, 0\nv_mul_f32 v25, {f2u(-LOG2E):#x}, v25")
                k("ds_write_b128 v50, v[24:27]")
            if i == 9:
                w4issue(self.o.get("w4a", 4), 8)
            if i or self.o.get("la30", 1):
                vm.wait(("a3", i), ("w3", i))
                k("s_barrier")
            self.tsl(26 + i)
        w4issue(self.o.get("w4b", 7), 9)
        k("s_waitcnt lgkmcnt(0)\ns_barrier")
        k(f"s_cmp_ge_u32 {sR}, 30\ns_cbranch_scc1 L_fin")
        w4issue(self.o.get("w4c", 12), 10)
        if ns:
            vm.wait(*[("w4", p) for p in range(ns)])
        k("s_barrier")
        w4issue(self.o.get("w4d", 15), 10)
        nxt = w4pre = 24 - len(todo4)
        assert todo4 == list(range(nxt, 24))
        self.tsl(36)
        self.ld_poll(3, False, f"s_cmp_eq_u32 {sT}, 1\ns_cselect_b32 s48, 32, 16\ns_cmp_eq_u32 {sT}, 2\ns_cselect_b32 s49, 16, 0\ns_bfm_b64 exec, s48, s49")
        self.tsl(37)
        la = self.o.get("la4", 3)
        na = 0
        for i in range(24):
            while na <= min(23, i + la) and na <= max(5, i + 3):
                E(self.it_act88(("a4", na), na, A4S(na)))
                na += 1
            s0 = self.o.get("w4s0", 2)
            target = min(24, max(i + la + 1, w4pre + ((24 - w4pre) * max(0, i - s0) + 19 - s0) // (20 - s0)))
            while nxt < target and (nxt < ns + 10 or nxt - 8 <= i - 1):
                E(self.it_w4(nxt))
                nxt += 1
            vm.wait(("a4", i), ("w4", i))
            k("s_barrier")
            if i in (0, 8, 16, 23):
                self.tsl(38 + (i + 1) // 8)
        assert nxt == 24

    def helper(self):
        k = self.k
        vm = VM(k)
        k("L_helper:")
        k(f"s_cmp_lg_u32 {sW}, 2\ns_cbranch_scc1 L_helper2\ns_waitcnt vmcnt(0)\nL_helper2:")
        k(f"s_lshl_b32 s64, {sG}, 1\ns_add_u32 s64, s64, {sR}\ns_sub_u32 s64, s64, 30")
        k(f"v_lshlrev_b32 v4, 7, v1\ns_lshl_b32 s65, {sW}, 4\ns_add_u32 s65, s65, s64")
        if self.o.get("htouch", 1):
            k("s_lshl_b32 s49, s65, 13")
            vm.issue("t", f"buffer_load_dword v10, v4, {SWO}, s49 offen")
            if not self.o.get("w2s", 1):
                for n in range(2):
                    k(f"s_add_u32 s48, s65, {128*n}\ns_lshl_b32 s48, s48, 13")
                    vm.issue("t2", f"buffer_load_dword v10, v4, {SW2}, s48 offen")
        k("s_cmp_lt_u32 s64, 8\ns_cselect_b32 s96, s16, s20\ns_cselect_b32 s97, s17, s21\ns_mov_b32 s98, 1966080\ns_mov_b32 s99, 0x20000")
        k(f"v_lshrrev_b32 v5, 3, v1\nv_and_b32 v6, 7, v1\ns_lshl_b32 s48, {sW}, 3\nv_add_u32 v7, s48, v5\ns_movk_i32 s48, 3072\nv_mul_u32_u24 v5, s48, v7")
        k("s_and_b32 s50, s64, 7\ns_mul_i32 s48, s50, 384\nv_lshl_add_u32 v5, v6, 4, v5\nv_add_u32 v5, s48, v5")
        k(f"s_mul_i32 s48, s50, 491520\ns_add_u32 s48, s48, {MID}\ns_lshr_b32 s49, s64, 3\nv_mul_u32_u24 v13, 384, v7\nv_add_u32 v13, s48, v13")
        k("s_lshl_b32 s48, s49, 7\nv_lshl_add_u32 v15, v6, 4, v13\nv_add_u32 v15, s48, v15")
        k("v_lshrrev_b32 v14, 2, v6\nv_mul_u32_u24 v14, 245760, v14\nv_add_u32 v14, v14, v13\nv_and_b32 v13, 3, v6\nv_lshl_add_u32 v14, v13, 4, v14\ns_lshl_b32 s48, s49, 6\ns_add_u32 s48, s48, 256\nv_add_u32 v14, s48, v14")
        mid0 = self.o.get("mid0", 4)

        def grp(n):
            k(f"s_mov_b32 s48, {n*64*3072}")
            for q in range(3):
                vm.issue(("c", n), f"buffer_load_dwordx4 {vr(64 + 12*n + 4*q, 4)}, v5, s[96:99], s48 offen offset:{q*128}" + AUX[self.o.get("haux", 0)])
        hd = self.o.get("hdepth", 2)
        for n in range(hd):
            grp(n)
        k("v_mov_b32 v8, 0x3f80\nv_mov_b32 v9, 0x3f800000")
        for e in range(24):
            k(f"v_mov_b32 v{16+e}, 0")
        for n in range(10):
            vm.wait(("c", n))
            if n + hd < 10:
                grp(n + hd)
            if n >= mid0:
                k(f"s_mov_b32 s49, {n*64*384}\ns_mov_b32 s51, {n*64*384 + 245760}")
                vm.issue("m", f"buffer_store_dwordx4 {vr(64 + 12*n + 4, 4)}, v14, {SCS}, s49 offen sc1")
                if self.o.get("pk", 1):
                    vm.issue("m", f"buffer_store_dwordx4 {vr(64 + 12*n, 4)}, v15, {SCS}, s49 offen sc1")
                    vm.issue("m", f"buffer_store_dwordx4 {vr(64 + 12*n + 8, 4)}, v15, {SCS}, s51 offen sc1")
            for q in range(3):
                for d in range(4):
                    k(f"v_dot2c_f32_bf16 v{16 + 8*q + 2*d}, v{64 + 12*n + 4*q + d}, v8\nv_dot2c_f32_bf16 v{17 + 8*q + 2*d}, v{64 + 12*n + 4*q + d}, v9")
        for e in range(24):
            k(f"v_add_f32_dpp v{16+e}, v{16+e}, v{16+e} row_ror:8 row_mask:0xf bank_mask:0xf")
        k(f"s_lshl_b32 s48, {sW}, 2\nv_add_u32 v7, s48, v3\ns_movk_i32 s48, 768\nv_mul_u32_u24 v7, s48, v7\nv_lshl_add_u32 v7, v6, 5, v7")
        for q in range(3):
            for h in range(2):
                k(f"ds_write_b128 v7, {vr(16 + 8*q + 4*h, 4)} offset:{HPART + q*256 + h*16}")
        k(self.HELLO_LD + "\ns_waitcnt vmcnt(0)")
        self.hello_check()
        k("s_waitcnt lgkmcnt(0)\ns_barrier")
        self.ts(3)
        k("s_cmp_eq_u32 s3, 1\ns_cbranch_scc1 L_help_ld")
        self.wtile_addr()
        if self.o.get("lat3"):
            nl = k.lab("L_nl")
            k(f"s_cmp_lg_u32 {sW}, 3\ns_cbranch_scc1 {nl}\ns_sleep 40")
            k(f"s_lshl_b32 s50, {sG}, 1\ns_add_u32 s50, s50, 4\ns_and_b32 s50, s50, 7\ns_mul_i32 s50, s50, 384\ns_mul_i32 s51, s64, {5*3072}\ns_add_u32 s50, s50, s51\ns_mov_b64 exec, 1")
            self.ts(43)
            for q in range(12):
                srd = (SW1, SW3)[q % 2]
                k(f"s_add_u32 s51, s50, {(140 + (q // 2) + (300 if q >= 6 else 0))*3072}\nbuffer_load_dword v7, off, {srd}, s51\ns_waitcnt vmcnt(0)")
                self.ts(44 + q)
            k(f"s_mov_b64 exec, -1\n{nl}:")
        k(f"s_cmp_eq_u32 {sW}, 3\ns_cbranch_scc1 L_help_c")
        k(f"v_lshlrev_b32 v4, 2, v0\nv_add_u32 v5, {HPART}, v4")
        for half in range(4):
            for e in range(8):
                k(f"ds_read_b32 v{64 + 8*half + e}, v5 offset:{(8*half + e)*768}")
            k("s_waitcnt lgkmcnt(0)")
        for st in (16, 8, 4, 2, 1):
            for e in range(st):
                k(f"v_add_f32 v{64+e}, v{64+e}, v{64+e+st}")
        k("s_mul_i32 s48, s64, 768")
        k(f"buffer_store_dword v64, v4, {SCS}, s48 offen sc1\nv_mov_b32 v5, 1\ns_waitcnt vmcnt(0)\ns_mov_b64 exec, 1")
        k(f"buffer_atomic_add v5, off, {SDBG}, 0 offset:16\ns_mov_b64 exec, -1")
        self.ts(11)
        k("L_help_c:\ns_barrier\ns_mov_b32 s82, 0\ns_branch L_comp_p3")
        k("L_help_ld:")
        if self.o.get("prio", 1):
            k("s_setprio 2")
        self.ld_lane_basics()
        self.ld_setup_w()
        self.ld_setup_rest()
        self.w2_pref_setup()
        self.w2_pref(0, 30)
        k("s_barrier")
        nt = self.o.get("ht3", 0)
        if nt:
            k(f"s_sub_u32 s49, {sR}, 30\ns_lshl_b32 s49, s49, 2\ns_add_u32 s49, s49, s60\ns_mul_i32 s49, s49, {4*3072}\ns_add_u32 s49, s49, {256*3072}")
            k("v_lshrrev_b32 v8, 1, v2\nv_mul_u32_u24 v8, 3, v8\nv_and_b32 v9, 1, v2\nv_lshl_add_u32 v8, v9, 1, v8\nv_mul_u32_u24 v9, 24, v3\nv_add_lshl_u32 v8, v8, v9, 7")
            for e in range(nt):
                k(f"buffer_load_dword v9, v8, {SW1}, s49 offen\ns_add_u32 s49, s49, {32*3072}")
        self.emit(vm, [x for i in range(4) for x in self.it_w3(i)][:4 * self.o.get("w3b", 3)])
        k("s_branch L_ld_p3")

    def comp_p1(self):
        k = self.k
        k("L_comp:")
        k(f"s_mul_i32 s48, {sW}, 14336\ns_add_u32 s48, s48, 13312\nv_lshl_add_u32 v8, v1, 4, s48")
        self.attn_setup()
        k("ds_write_b128 v8, v[236:239]")
        k("v_lshrrev_b32 v57, 1, v2\nv_xor_b32 v57, v57, v3\nv_lshlrev_b32 v57, 4, v57\nv_lshl_add_u32 v4, v2, 7, v57\nv_xor_b32 v5, 64, v4")
        self.wfrag_addr(lambda: k(f"v_xor_b32 v57, {sW}, v57"))
        k(f"v_add_u32 v6, {W1S(0)}, v57\nv_add_u32 v7, {W1S(2)}, v57")
        k(f"v_lshlrev_b32 v8, 3, v2\nv_add_u32 v8, {STAT1}, v8")
        k("v_mov_b32 v28, 0\nv_mov_b32 v29, 0\ns_bfm_b64 exec, 8, 8\nds_write_b64 v8, v[28:29] offset:768\ns_mov_b64 exec, -1")
        k(f"v_and_b32 v57, 1, v2\ns_movk_i32 s48, {PB}\nv_mul_u32_u24 v57, s48, v57\nv_lshrrev_b32 v58, 1, v2\ns_movk_i32 s48, {RS}")
        k(f"v_mad_u32_u24 v57, v58, s48, v57\nv_lshl_add_u32 v57, v3, 3, v57\ns_lshl_b32 s48, {sW}, 5\ns_add_u32 s48, s48, {IMG+16}\nv_add_u32 v9, s48, v57")
        for m in range(7):
            k(f"v_add_u32 v{40+m}, {m*8*RS}, v9")
        k(f"v_mov_b32 v58, {OUTST}\nv_cmp_gt_u32 vcc, 8, v2\nv_cndmask_b32 v46, v58, v46, vcc")
        k(f"v_lshrrev_b32 v58, 1, v3\ns_lshr_b32 s48, {sW}, 1\nv_cmp_eq_u32 vcc, s48, v58\nv_mov_b32 v58, {OOB:#x}\nv_and_b32 v59, 1, v3\nv_lshlrev_b32 v56, 4, v2")
        k("s_movk_i32 s48, 1792\nv_mad_u32_u24 v57, v59, s48, v56\nv_cndmask_b32 v10, v58, v57, vcc\ns_movk_i32 s48, 768\nv_mad_u32_u24 v57, v59, s48, v56\nv_cndmask_b32 v13, v58, v57, vcc")
        k(f"s_mul_i32 s73, {sR}, 5120\ns_add_u32 s73, s73, {EXPB}\ns_add_u32 s74, s73, 3584\nv_mov_b32 v11, {PUREW}")
        k(f"s_cmp_lt_u32 {sJM}, 2\ns_cselect_b32 s48, 3, 0\ns_cmp_eq_u32 {sJM}, 2\ns_cselect_b32 s48, 9, s48\ns_cmp_eq_u32 s48, {sW}\ns_cselect_b32 s82, 1, 0")
        SA, SF, SC = (38, 39, 47, 60), (14, 18, 22, 56), (48, 52)
        for q in range(2):
            k(f"s_mul_i32 s48, {sW}, 26\ns_add_u32 s48, s48, {13*q}\nv_add_u32 v57, s48, v2\nv_mov_b32 v58, 104\nv_cmp_gt_u32 vcc, 13, v2\nv_cndmask_b32 v57, v58, v57, vcc")
            k(f"v_lshrrev_b32 v58, 1, v57\nv_and_b32 v58, 7, v58\nv_xor_b32 v58, v58, v3\nv_lshlrev_b32 v58, 4, v58\nv_lshl_add_u32 v{SA[2*q]}, v57, 7, v58\nv_xor_b32 v{SA[2*q+1]}, 64, v{SA[2*q]}")
        k(f"s_mul_i32 s48, {sW}, 208\ns_add_u32 s48, s48, {STAT1}\nv_lshl_add_u32 v61, v2, 3, s48")
        for q, mk in enumerate((0x22222222, 0x44444444, 0x88888888)):
            k(f"s_mov_b32 s{56+2*q}, {mk:#x}\ns_mov_b32 s{57+2*q}, {mk:#x}")
        k(f"s_mov_b32 s48, {f2u(1.0/640):#x}\ns_mov_b32 s49, {f2u(1e-5):#x}\ns_mov_b32 s50, 0x00f0000f\ns_mov_b32 s51, 0x10000f00")
        sreads = lambda i: [f"ds_read_b128 {vr(SF[e], 4)}, v{SA[e]} offset:{XS(i % 4)}" for e in range(4)]
        smf = lambda i: [f"v_mfma_f32_16x16x32_bf16 {vr(SC[e // 2], 4)}, {vr(SF[e], 4)}, {vr(SF[e], 4)}, "
                         + ("0" if i == 0 and e % 2 == 0 else vr(SC[e // 2], 4)) for e in (0, 2, 1, 3)]
        if self.o.get("x_nosr"):
            sreads = lambda i: []
        if self.o.get("x_nosm"):
            smf = lambda i: []
        fin = []
        for f in (lambda g, a, b: f"v_mov_b32 {a}, v{g+3}", lambda g, a, b: f"v_mov_b32 {b}, v{g+3}",
                  lambda g, a, b: f"v_cndmask_b32 v{g}, v{g}, v{g+1}, s[56:57]", lambda g, a, b: f"v_permlane32_swap_b32 {a}, {b}",
                  lambda g, a, b: f"v_cndmask_b32 v{g}, v{g}, v{g+2}, s[58:59]", lambda g, a, b: f"v_mov_b32 {a}, {b}",
                  lambda g, a, b: f"v_cndmask_b32 v{g}, v{g}, v{g+3}, s[60:61]", lambda g, a, b: f"v_permlane16_swap_b32 {a}, {b}",
                  lambda g, a, b: f"v_mul_f32 v{g}, s48, v{g}", lambda g, a, b: f"v_mul_f32 {b}, s48, -{b}",
                  lambda g, a, b: f"v_fma_f32 v{g}, -{b}, {b}, v{g}", lambda g, a, b: f"v_max_f32 v{g}, 0, v{g}",
                  lambda g, a, b: f"v_add_f32 v{g}, s49, v{g}", lambda g, a, b: f"v_rsq_f32 {a}, v{g}"):
            for q in range(2):
                fin.append(f(SC[q], f"v{14+2*q}", f"v{15+2*q}"))
        acc = lambda mat, m: (64 + 4 * (m - 1), 88 + 4 * m, 116 + 4 * m)[mat]
        tiles = [(mat, m) for m in range(7) for mat in range(3) if not (mat == 0 and m == 0)]

        def reads(n):
            i, s = n // 2, n % 2
            sl, st = i % 4, 144 + 40 * (n % 2)
            r = []
            wb, wo_ = (6, W1S(sl) - W1S(0)) if sl < 2 else (7, W1S(sl) - W1S(2))
            xr = [f"ds_read_b128 {vr(st + 4*m, 4)}, v{4+s} offset:{XS(sl) + m*2048}" for m in range(7)]
            wr = [f"ds_read_b64_tr_b16 {vr(st + 28 + 4*mat + 2*h, 2)}, v{wb} offset:{wo_ + mat*8192 + s*4096 + h*512}"
                  for mat in range(3) for h in range(2)]
            return wr + xr

        def mfmas(n):
            st = 144 + 40 * (n % 2)
            return [f"v_mfma_f32_16x16x32_bf16 {vr(acc(mat, m), 4)}, {vr(st + 28 + 4*mat, 4)}, {vr(st + 4*m, 4)}, "
                    + ("0" if n == 0 else vr(acc(mat, m), 4)) for (mat, m) in tiles]

        assert self.o.get("rot", 1) == 1
        k(f"s_mul_i32 s75, {sG}, 10\ns_lshr_b32 s75, s75, 3\ns_sub_u32 s75, 10, s75\ns_cmp_eq_u32 s75, 10\ns_cselect_b32 s75, 0, s75")
        k(f"s_and_b32 s76, {sW}, 1\ns_lshl_b32 s76, s76, 2\nv_lshrrev_b32 v56, 1, v3\nv_or_b32 v56, s76, v56\ns_lshr_b32 s76, {sW}, 1\ns_mul_i32 s76, s76, 48\ns_lshl_b32 s77, {sNP}, 1\ns_sub_u32 s77, s77, 17")
        for i, r in enumerate((0, 9, 12)):
            k(f"s_add_u32 s78, s76, {16*i}\nv_add_u32 v57, s78, v2\nv_lshlrev_b32 v58, 1, v57\nv_subrev_u32 v59, s77, v58\nv_add_u32 v58, 16, v58")
            k(f"v_cmp_gt_u32 vcc, {sNP}, v57\nv_cndmask_b32 v58, v59, v58, vcc\nv_min_u32 v58, 111, v58")
            k(f"v_lshrrev_b32 v59, 1, v58\nv_and_b32 v59, 7, v59\nv_xor_b32 v59, v59, v56\nv_lshlrev_b32 v59, 4, v59\nv_lshl_add_u32 v59, v58, 7, v59\nv_and_b32 v57, 1, v3\nv_lshl_add_u32 v{r}, v57, 3, v59")
        self.hello_word()
        self.ts(1)
        if self.o.get("pads", 4):
            k("s_mov_b32 s3, 2\ns_mov_b64 exec, 0")
            for q in range(3):
                k(f"s_cmp_eq_u32 {sW}, {q}\ns_cbranch_scc1 L_CHAIN{q}")
            k("s_branch L_CHAIN3\nL_back:\ns_mov_b64 exec, -1\ns_mov_b32 s3, 0")
        k("s_waitcnt lgkmcnt(0) vmcnt(0)")
        self.ts(51)
        k("s_barrier")
        self.ts(2)
        for r in reads(0) + sreads(0):
            k(r)
        for n in range(20):
            late = self.o.get("late1", 0)
            if n == 4:
                sk = k.lab("L_hs")
                k(f"s_cmp_lg_u32 {sW}, 0\ns_cbranch_scc1 {sk}\ns_setprio 3")
                self.hello_send()
                k(f"s_setprio 0\n{sk}:")
            k("s_waitcnt lgkmcnt(4)" if n == 0 else "s_waitcnt lgkmcnt(0)")
            mm = mfmas(n)
            if n % 2 == 0 and n // 2 not in (1, 6):
                sk = k.lab("L_xr")
                k(mm.pop(0))
                k(f"s_cmp_lg_u32 s75, {n // 2}\ns_cbranch_scc1 {sk}")
                for i, r in enumerate((0, 9, 12)):
                    k(f"ds_read_b64 {vr(26 + 4*i, 2)}, v{r} offset:{XS((n // 2) % 4)}\nv_xor_b32 v{r}, 32, v{r}\nds_read_b64 {vr(28 + 4*i, 2)}, v{r} offset:{XS((n // 2) % 4)}")
                k(f"{sk}:")
            if n == 17 and late:
                for m in mm:
                    k(m)
                k("s_barrier")
                self.ts(11)
                for r in sreads(9) + reads(18):
                    k(r)
                k("s_waitcnt lgkmcnt(13)")
                for m in smf(9):
                    k(m)
                continue
            if n % 2 == 1 and n < 19:
                k("s_barrier")
                if self.o.get("ts") == 1 or n in (1, 17):
                    self.ts(2 + (n + 1) // 2)
            if n >= 18:
                if n == 18:
                    rr = reads(19)
                    for i, m in enumerate(mm):
                        k(m)
                        if rr:
                            k(rr.pop(0))
                        if i >= 3 and fin:
                            k(fin.pop(0))
                else:
                    mm = mm[-3:] + mm[:-3]
                    while fin:
                        k(mm.pop(0))
                        for x in fin[:2]:
                            k(x)
                        fin = fin[2:]
                    k("s_mov_b64 exec, s[50:51]\nds_write2_b64 v61, v[14:15], v[16:17] offset0:0 offset1:13\ns_mov_b64 exec, -1")
                    dp = [f"v_mov_b32_dpp v{160 + 4*mat + r}, v{acc(mat, 6) + r} row_newbcast:15 row_mask:0xf bank_mask:0xf" for mat in range(3) for r in range(4)]
                    for _ in range(4):
                        k(mm.pop(0))
                        k(dp.pop(0))
                        k(dp.pop(0))
                    k("s_waitcnt lgkmcnt(0)\ns_barrier")
                    sd = [f"ds_read_b64 {vr(144 + 2*m, 2)}, v8 offset:{m*128}" for m in (6, 0, 1, 2, 3, 4, 5)] + ["ds_read_b32 v11, v11"] + dp
                    for m in mm:
                        k(m)
                        for x in sd[:2]:
                            k(x)
                        sd = sd[2:]
                    assert not sd
            elif n % 2 == 1 or n == 0:
                interleave(k, mm, (sreads((n + 1) // 2) if n else []) + reads(n + 1))
                k("s_waitcnt lgkmcnt(13)")
                for m in smf((n + 1) // 2):
                    k(m)
            else:
                interleave(k, mm, reads(n + 1))
        self.ts(12)
        k(f"s_waitcnt lgkmcnt(0) vmcnt(0)\nv_readfirstlane_b32 {sSLOW}, v11")

        def conv(mat, m, d):
            a, st, cs = acc(mat, m), 144 + 2 * m, 160 + 4 * mat
            o = [f"v_pk_fma_f32 {vr(a + 2*q, 2)}, {vr(cs + 2*q, 2)}, {vr(st, 2)}, {vr(a + 2*q, 2)} op_sel:[0,1,0] op_sel_hi:[1,1,1]" for q in range(2)]
            if mat:
                o += [f"v_pk_mul_f32 {vr(a + 2*q, 2)}, {vr(a + 2*q, 2)}, {vr(st, 2)} op_sel_hi:[1,0]" for q in range(2)]
            o += [f"v_cvt_pk_bf16_f32 v{d}, v{a}, v{a+1}", f"v_cvt_pk_bf16_f32 v{d+1}, v{a+2}, v{a+3}"]
            return o

        def body(export):
            late = []
            ea = AUX[self.o.get("est", 0)]
            for g in [("kv", 6), ("kv", 0), ("kv", 1), ("kv", 2), ("q", 0), ("kv", 3), ("kv", 4), ("q", 1), ("kv", 5), ("q", 2)]:
                if g[0] == "kv":
                    m = g[1]
                    d = acc(1, m)
                    cv = conv(1, m, d) + conv(2, m, d + 2)
                    st = f"buffer_store_dwordx4 {vr(d, 4)}, v10, {SWS}, s73 offen offset:{m*256}{ea}"
                    wr = [f"ds_write2_b64 v{40+m}, {vr(d, 2)}, {vr(d+2, 2)} offset0:20 offset1:40"]
                else:
                    m = 2 * g[1] + 1
                    d = acc(0, m)
                    cv = conv(0, m, d) + conv(0, m + 1, d + 2)
                    st = f"buffer_store_dwordx4 {vr(d, 4)}, v13, {SWS}, s74 offen offset:{g[1]*256}{ea}"
                    wr = [f"ds_write_b64 v{40+m}, {vr(d, 2)}", f"ds_write_b64 v{41+m}, {vr(d+2, 2)}"]
                for x in cv:
                    k(x)
                if export:
                    k(st)
                    late += wr
                else:
                    for x in wr:
                        k(x)
            for x in late:
                k(x)

        lexp = k.lab("L_exp")
        k(f"s_cmp_eq_u32 s82, 1\ns_cbranch_scc1 {lexp}")
        body(False)
        k("s_branch L_attn")
        k(f"{lexp}:\n.x_pad")
        body(True)
        k(f"s_cmp_eq_u32 {sSLOW}, 0\ns_cbranch_scc1 L_attn")
        k("s_waitcnt vmcnt(0)\nbuffer_wbl2 sc1")

    def wfrag_addr(self, xorj):
        k = self.k
        k("v_lshrrev_b32 v57, 3, v1\nv_and_b32 v57, 3, v57")
        xorj()
        k("v_lshlrev_b32 v57, 5, v57\nv_and_b32 v58, 3, v1\nv_lshl_add_u32 v57, v58, 3, v57")
        k("v_lshrrev_b32 v58, 2, v2\nv_lshl_add_u32 v58, v3, 3, v58\nv_lshl_add_u32 v57, v58, 7, v57")

    def attention(self):
        k = self.k
        k("L_attn:")
        k("s_waitcnt lgkmcnt(0)\ns_barrier")
        self.ts(13)
        sig, csig, nomid = k.lab("L_asig"), k.lab("L_csig"), k.lab("L_nomid")
        if self.o.get("midat", 0) == 0:
            k(f"s_cmp_eq_u32 s3, 0\ns_cbranch_scc1 {nomid}")
            self.ld_attn_mid()
            k(f"{nomid}:")
        k(f"s_cmp_eq_u32 s68, 0\ns_cbranch_scc1 {sig}")
        QL = lambda b: 64 + 16 * b
        QH = lambda b: 68 + 16 * b
        K1 = lambda b: 72 + 16 * b
        K2 = lambda b: 76 + 16 * b
        V1 = 112
        V2 = lambda b: 120 + 4 * b
        Sx = lambda b: 132 + 4 * b
        P = lambda b: 192 + 4 * b
        O1 = lambda b: 144 + 4 * b
        O2 = 156
        L = lambda b: 160 + 4 * b
        M = lambda b: 172 + b
        C = lambda b: 176 + b
        BL = 16 * RS
        B3 = range(3)
        MF = "v_mfma_f32_16x16x32_bf16"

        def rd(b):
            k2 = 242 if b < 2 else 244
            for h in range(2):
                k(f"ds_read_b64 {vr(K1(b)+2*h, 2)}, v{240+h} offset:{b*BL + 160}")
            for h in range(2):
                k(f"ds_read_b64 {vr(QL(b)+2*h, 2)}, v{232+h} offset:{b*BL + 8*RS}")
            for h in range(2):
                k(f"ds_read_b64 {vr(K2(b)+2*h, 2)}, v{k2+h} offset:{b*BL + 160}")
            for h in range(2):
                k(f"ds_read_b64 {vr(QH(b)+2*h, 2)}, v{234+h} offset:{b*BL + 8*RS}")

        def s1(b):
            k(f"{MF} {vr(Sx(b), 4)}, {vr(K1(b), 4)}, {vr(QL(b), 4)}, {vr(228 if b == 0 else 224, 4)}")

        def s2(b):
            k(f"{MF} {vr(Sx(b), 4)}, {vr(K2(b), 4)}, {vr(QH(b), 4)}, {vr(Sx(b), 4)}")

        rd(0)
        rd(1)
        for e in range(12):
            k(f"v_mov_b32 v{P(0)+e}, 0")
        k("s_waitcnt lgkmcnt(8)")
        s1(0)
        s2(0)
        rd(2)
        k("s_waitcnt lgkmcnt(8)")
        s1(1)
        s2(1)
        for b in B3:
            k(f"ds_read_b32 v{C(b)}, v255 offset:{b*256}")
        for c in range(4):
            k(f"ds_read_b64_tr_b16 {vr(V1 + 2*c, 2)}, v{252 if c < 3 else 253} offset:{c*BL + 320}")
        k("s_waitcnt lgkmcnt(7)")
        s1(2)
        s2(2)
        for b in B3:
            for h in range(2):
                k(f"ds_read_b64_tr_b16 {vr(V2(b) + 2*h, 2)}, v{254 if b + h == 3 else 249 + b} offset:{(b+h)*BL + 352}")
        if self.o.get("tsa"):
            self.ts(43)
        k(f"s_mov_b32 s48, {f2u(QSCALE):#x}\ns_mov_b32 s50, 0xff00ff00\ns_mov_b32 s51, 0\ns_not_b64 s[52:53], s[50:51]")
        for b in range(2):
            k(f"v_max3_f32 v{M(b)}, v{Sx(b)}, v{Sx(b)+1}, v{Sx(b)+2}")
        for b in range(2):
            k(f"v_max_f32 v{M(b)}, v{M(b)}, v{Sx(b)+3}")
        k("s_waitcnt lgkmcnt(10)")
        for b in B3:
            k(f"v_mul_f32 v{C(b)}, s48, v{C(b)}")
        k(f"v_max3_f32 v{M(2)}, v{Sx(2)}, v{Sx(2)+1}, v{Sx(2)+2}")
        k(f"v_permlane32_swap_b32 v{M(0)}, v{M(1)}")
        k(f"v_max_f32 v{M(2)}, v{M(2)}, v{Sx(2)+3}\nv_max_f32 v{M(0)}, v{M(0)}, v{M(1)}")
        k(f"v_mov_b32 v{M(3)}, v{M(2)}")
        k(f"v_permlane32_swap_b32 v{M(2)}, v{M(3)}")
        k(f"v_max_f32 v{M(2)}, v{M(2)}, v{M(3)}")
        k(f"v_permlane16_swap_b32 v{M(0)}, v{M(2)}")
        k(f"v_max_f32 v{M(0)}, v{M(0)}, v{M(2)}")
        k(f"v_mov_b32 v{M(2)}, v{M(0)}")
        k(f"v_permlane16_swap_b32 v{M(0)}, v{M(2)}")
        k(f"v_mov_b32 v{M(1)}, v{M(0)}\nv_mul_f32 v{M(2)}, v{C(2)}, v{M(2)}")
        k(f"v_permlane32_swap_b32 v{M(0)}, v{M(1)}")
        if self.o.get("tsa"):
            self.ts(44)
        for q in range(4):
            k(f"v_fma_f32 v{Sx(2)+q}, v{Sx(2)+q}, v{C(2)}, -v{M(2)}")
        for b in range(2):
            k(f"v_mul_f32 v{M(b)}, v{C(b)}, v{M(b)}")
        for b in range(2):
            for q in range(4):
                k(f"v_fma_f32 v{Sx(b)+q}, v{Sx(b)+q}, v{C(b)}, -v{M(b)}")
        for b in B3:
            for q in range(4):
                k(f"v_exp_f32 v{Sx(b)+q}, v{Sx(b)+q}")
        for h, mk in enumerate(("s[52:53]", "s[50:51]")):
            k(f"s_mov_b64 exec, {mk}")
            for b in B3:
                for q in range(2):
                    k(f"v_cvt_pk_bf16_f32 v{P(b)+2*h+q}, v{Sx(b)+2*q}, v{Sx(b)+2*q+1}")
        k("s_mov_b64 exec, -1\ns_waitcnt lgkmcnt(0)")
        if self.o.get("tsa"):
            self.ts(45)
        for b in B3:
            k(f"{MF} {vr(L(b), 4)}, v[236:239], {vr(P(b), 4)}, 0")
        for b in B3:
            k(f"{MF} {vr(O1(b), 4)}, {vr(V1 + 2*b, 4)}, {vr(P(b), 4)}, 0")
        k("v_cmp_eq_u32 s[50:51], 1, v3\nv_cmp_lt_u32 s[52:53], 1, v3")
        for b in B3:
            k(f"{MF} {vr(O2, 4)}, {vr(V2(b), 4)}, {vr(P(b), 4)}, {'0' if b == 0 else vr(O2, 4)}")
            k(f"v_rcp_f32 v{L(b)}, v{L(b)}")
        if self.o.get("tsa"):
            self.ts(46)
        oa = AUX[self.o.get("ost", 1)]
        PK = 180
        for b in B3:
            for q in range(4):
                k(f"v_mul_f32 v{O1(b)+q}, v{O1(b)+q}, v{L(b)}")
            if b:
                k(f"v_cndmask_b32 v{L(0)+1}, v{L(0) + (b > 1)}, v{L(b)}, s[{48+2*b}:{49+2*b}]")
            k(f"v_cvt_pk_bf16_f32 v{PK+2*b}, v{O1(b)}, v{O1(b)+1}\nv_cvt_pk_bf16_f32 v{PK+2*b+1}, v{O1(b)+2}, v{O1(b)+3}")
        k(f"v_permlane16_swap_b32 v{PK}, v{PK+2}\nv_permlane16_swap_b32 v{PK+1}, v{PK+3}")
        k(f"v_mov_b32 v{PK+6}, v{PK+4}\nv_mov_b32 v{PK+7}, v{PK+5}")
        if self.o.get("tsa"):
            self.ts(47)
        k(f"buffer_store_dwordx4 {vr(PK, 4)}, v246, {SWS}, 0 offen{oa}")
        k(f"v_mul_f32 v{O2}, v{O2}, v{L(0)+1}")
        k(f"v_permlane16_swap_b32 v{PK+4}, v{PK+6}\nv_permlane16_swap_b32 v{PK+5}, v{PK+7}")
        k(f"buffer_store_dwordx4 {vr(PK+4, 4)}, v247, {SWS}, 0 offen offset:512{oa}")
        for q in range(1, 4):
            k(f"v_mul_f32 v{O2+q}, v{O2+q}, v{L(0)+1}")
        k(f"v_cvt_pk_bf16_f32 v{O2}, v{O2}, v{O2+1}\nv_cvt_pk_bf16_f32 v{O2+1}, v{O2+2}, v{O2+3}")
        k(f"buffer_store_dwordx2 {vr(O2, 2)}, v248, {SWS}, 0 offen{oa}")
        k(f"{sig}:")
        self.ts(15)
        k(f"s_cmp_eq_u32 s3, 0\ns_cbranch_scc1 {csig}")
        n = self.ld_attn_mid() if self.o.get("midat", 0) == 1 else 0
        self.signal(1, younger=n)
        self.ts(16)
        nt = self.o.get("wt3", 0)
        if nt:
            k(f"s_and_b32 s48, {sJM}, 3\ns_or_b32 s48, s48, s68\ns_cmp_lg_u32 s48, 0\ns_cbranch_scc1 L_ld_p2")
            k(f"s_lshl_b32 s48, {sT}, 2\ns_lshr_b32 s49, {sJM}, 2\ns_add_u32 s48, s48, s49\ns_cmp_ge_u32 {sJ}, 5\ns_cselect_b32 s49, 2, 0\ns_add_u32 s48, s48, s49")
            k("s_lshl_b32 s49, s48, 13\nv_lshlrev_b32 v8, 7, v1")
            for e in range(nt):
                k(f"buffer_load_dword v9, v8, {(SW1, SW3)[e & 1]}, s49 offen")
                if e & 1:
                    k(f"s_add_u32 s49, s49, {12*8192}")
        k("s_branch L_ld_p2")
        k(f"{csig}:")
        self.signal(1)
        self.ts(16)

    WIN = (0, 98304)

    @staticmethod
    def wreg(s, ks, ns):
        return 168 + 16 * (s - 2) + 8 * ks if 2 <= s < ns else 88 + 40 * (s % 2) + 20 * ks + 12

    def gemm88(self, nst, wslot, aoff, tsbase, rem=99, endbar=False, ns=0):
        k = self.k
        acc = lambda i, a: 64 + 8 * i + 4 * a

        def reads(s, ks):
            st = 88 + 40 * (s % 2) + 20 * ks
            w = wslot(s)
            win = 1 if w >= self.WIN[1] else 0
            r = []
            for a in range(2 if s >= ns else 0):
                for h in range(2):
                    r.append(f"ds_read_b64_tr_b16 {vr(st + 12 + 4*a + 2*h, 2)}, v{40 + 2*win + a} offset:{w - self.WIN[win] + ks*4096 + h*512}")
            for i in range(3):
                if s >= rem:
                    for h in range(2):
                        r.append(f"ds_read_b64 {vr(st + 4*i + 2*h, 2)}, v{52+i} offset:{aoff(s) + ks*3072 + h*1536}")
                else:
                    r.append(f"ds_read_b128 {vr(st + 4*i, 4)}, v44 offset:{aoff(s) + ks*1408 + i*256}")
            return r

        def mfmas(s, ks):
            st = 88 + 40 * (s % 2) + 20 * ks
            return [f"v_mfma_f32_16x16x32_bf16 {vr(acc(i, a), 4)}, {vr(self.wreg(s, ks, ns) + 4*a, 4)}, {vr(st + 4*i, 4)}, {vr(acc(i, a), 4)}"
                    for i in range(3) for a in range(2)]

        def mix(mm, rr):
            ex = len(rr) - len(mm)
            for i, m in enumerate(mm):
                k(m)
                for _ in range(2 if i < ex else 1):
                    if rr:
                        k(rr.pop(0))

        k("s_barrier")
        self.ts(tsbase)
        for r in reads(0, 0) + reads(0, 1):
            k(r)
        for s in range(1, nst):
            if s == nst - 1 and self.o.get("late_last", 1):
                k(f"s_waitcnt lgkmcnt({len(reads(s-1, 1))})")
                mix(mfmas(s - 1, 0), [])
                k("s_waitcnt lgkmcnt(0)")
                mix(mfmas(s - 1, 1), [])
                k("s_barrier")
                for r in reads(s, 0) + reads(s, 1):
                    k(r)
            else:
                k(f"s_barrier\ns_waitcnt lgkmcnt({len(reads(s-1, 1))})")
                mix(mfmas(s - 1, 0), reads(s, 0))
                k(f"s_waitcnt lgkmcnt({len(reads(s, 0))})\ns_nop 0")
                mix(mfmas(s - 1, 1), reads(s, 1))
        k(f"s_waitcnt lgkmcnt({len(reads(nst-1, 1))})")
        mix(mfmas(nst - 1, 0), [])
        k("s_waitcnt lgkmcnt(0)")
        if endbar == 1:
            k("s_barrier")
        mix(mfmas(nst - 1, 1), [])

    def wtile_addr(self):
        k = self.k
        k(f"s_and_b32 s72, {sW}, 1\ns_lshl_b32 s48, s72, 1")
        self.wfrag_addr(lambda: k("v_xor_b32 v57, s48, v57"))
        k(f"v_mov_b32 v40, v57\nv_xor_b32 v41, 32, v57\nv_add_u32 v42, {self.WIN[1]}, v40\nv_add_u32 v43, {self.WIN[1]}, v41")

    def unpack_acc(self, src):
        k = self.k
        for i in range(3):
            for a in range(2):
                for q in range(2):
                    d, s = 64 + 8 * i + 4 * a + 2 * q, src + 4 * i + 2 * a + q
                    k(f"v_lshlrev_b32 v{d}, 16, v{s}\nv_and_b32 v{d+1}, 0xffff0000, v{s}")

    def comp_p2(self):
        k = self.k
        k(f"s_and_b32 s64, {sW}, 1\ns_lshr_b32 s65, {sW}, 1")
        self.wtile_addr()
        k("s_mul_i32 s66, s65, 48\nv_add_u32 v45, s66, v2")
        k(f"s_movk_i32 s48, 176\nv_mad_u32_u24 v57, v3, s48, v45\nv_lshlrev_b32 v57, 4, v57\nv_add_u32 v44, {A2B}, v57")
        k(f"s_lshl_b32 s48, {sJ}, 1\ns_add_u32 s48, s48, s64\ns_mul_i32 s50, {sT}, 88")
        k(f"s_lshl_b32 s49, s48, 14\ns_lshl_b32 s51, s50, 4\ns_add_u32 s49, s49, s51\ns_add_u32 s49, s49, {HBUF}")
        k("v_lshlrev_b32 v57, 4, v45\nv_lshl_add_u32 v57, v3, 12, v57\nv_add_u32 v48, s49, v57")
        k(f"s_lshl_b32 s67, {sNP}, 1\ns_sub_u32 s51, s67, 32\nv_cmp_gt_u32 vcc, s51, v45\nv_mov_b32 v58, {OOB:#x}\nv_cndmask_b32 v49, v58, v48, vcc")
        k(f"s_mul_i32 s49, {sW}, 384\ns_add_u32 s49, s49, {OUTST}\nv_lshl_add_u32 v50, v2, 3, s49\nv_lshl_add_u32 v51, v1, 3, s49")
        k(f"s_lshl_b32 s49, {sJ}, 8\ns_add_u32 s49, s49, s50\ns_add_u32 s49, s49, s66\ns_lshl_b32 s49, s49, 3\ns_add_u32 s49, s49, {STAT2}")
        k("v_lshl_add_u32 v57, v1, 3, s49\ns_sub_u32 s49, s67, s66\ns_min_u32 s49, s49, 48\nv_cmp_gt_u32 vcc, s49, v1\nv_cndmask_b32 v55, v58, v57, vcc")
        k("s_mov_b32 s52, 0x00f0000f\ns_mov_b32 s53, 0xf0000f00")
        k(f"s_movk_i32 s48, 384\nv_mul_u32_u24 v56, s48, v3\nv_add_u32 v56, {A2B}, v56\ns_sub_u32 s48, 768, {sNP}")
        for i in range(3):
            k(f"v_add_u32 v57, {16*i}, v45\nv_add_u32 v59, s48, v57\nv_cmp_gt_u32 vcc, {sNP}, v57\nv_cndmask_b32 v57, v59, v57, vcc\nv_lshl_add_u32 v{52+i}, v57, 3, v56")
        for q, mk in enumerate((0x22222222, 0x44444444, 0x88888888)):
            k(f"s_mov_b32 s{56+2*q}, {mk:#x}\ns_mov_b32 s{57+2*q}, {mk:#x}")
        self.unpack_acc(26)
        k("s_barrier")
        self.ts(21)
        self.gemm88(10, lambda s: WOP[s], lambda s: A2L[s] - A2B, 22, rem=8, endbar=0 if self.o.get("hov", 1) else 1)
        self.ts(23)
        for i in range(3):
            for a in range(2):
                s = 64 + 8 * i + 4 * a
                k(f"v_cvt_pk_bf16_f32 v{240 + 4*i + 2*a}, v{s}, v{s+1}\nv_cvt_pk_bf16_f32 v{241 + 4*i + 2*a}, v{s+2}, v{s+3}")
            if i == 0 and self.o.get("hov", 1):
                k("s_barrier")
            k(f"buffer_store_dwordx4 {vr(240 + 4*i, 4)}, v{48 if i < 2 else 49}, {SWS}, 0 offen offset:{i*256}" + AUX[self.o.get("hst", 0 if self.o.get("hov", 1) else 1)])
        hook = self.o.get("hook2", 1)
        if hook == 0:
            k("s_barrier")
        for i in range(3):
            k(f"v_mfma_f32_16x16x32_bf16 {vr(88 + 8*i, 4)}, v[236:239], {vr(240 + 4*i, 4)}, 0")
            k(f"v_mfma_f32_16x16x32_bf16 {vr(92 + 8*i, 4)}, {vr(240 + 4*i, 4)}, {vr(240 + 4*i, 4)}, 0")
        for i in range(3):
            g = 92 + 8 * i
            k(f"v_cndmask_b32 v{g}, v{g}, v{g+1}, s[56:57]\nv_cndmask_b32 v{g}, v{g}, v{g+2}, s[58:59]\nv_cndmask_b32 v{89 + 8*i}, v{g}, v{g+3}, s[60:61]")
        k("s_mov_b64 exec, s[52:53]\nds_write2_b64 v50, v[88:89], v[96:97] offset0:0 offset1:16\nds_write_b64 v50, v[104:105] offset:256\ns_mov_b64 exec, -1")
        self.signal(2)
        self.ts(24)
        k("s_waitcnt lgkmcnt(0)\ns_barrier")
        sk = k.lab("L_nost")
        k(f"s_cmp_lg_u32 s64, 0\ns_cbranch_scc1 {sk}")
        k("ds_read2_b64 v[88:91], v51 offset0:0 offset1:48\ns_waitcnt lgkmcnt(0)\nv_add_f32 v88, v88, v90\nv_add_f32 v89, v89, v91")
        k(f"buffer_store_dwordx2 v[88:89], v55, {SWS}, 0 offen" + AUX[self.o.get("sst", 0)])
        k(f"{sk}:\ns_mov_b32 s82, 1")

    def stat_signal(self):
        k = self.k
        sk = k.lab("L_nss")
        k(f"s_andn2_b32 s48, s82, s64\ns_cbranch_scc0 {sk}")
        self.signal(2, plus=4)
        k(f"{sk}:")

    def comp_p3(self):
        k = self.k
        k("L_comp_p3:")
        k(f"s_and_b32 s64, {sW}, 1\ns_lshr_b32 s65, {sW}, 1")
        k("s_mul_i32 s48, s64, 96\nv_xor_b32 v4, s48, v40\nv_xor_b32 v5, 64, v4")
        k(f"v_add_u32 v6, {self.WIN[1]}, v4\nv_add_u32 v7, {self.WIN[1]}, v5")
        k(f"s_and_b32 s51, {sR}, 1\ns_add_u32 s48, s51, s64\ns_lshl_b32 s48, s48, 7\ns_add_u32 s48, s48, {CSL}\nv_lshl_add_u32 v36, v3, 4, s48\nv_add_u32 v37, 64, v36")
        k(f"s_xor_b32 s48, s51, 1\ns_lshl_b32 s48, s48, 2\ns_add_u32 s48, s48, s64\ns_lshl_b32 s48, s48, 6\ns_add_u32 s48, s48, {CSL}\nv_lshl_add_u32 v38, v3, 4, s48")
        k(f"s_lshl_b32 s48, s65, 6\nv_add_u32 v57, s48, v2\nv_lshl_add_u32 v58, v3, 7, v57\nv_lshlrev_b32 v58, 4, v58\nv_add_u32 v10, {A3S(0)}, v58")
        k(f"v_lshlrev_b32 v11, 4, v57\nv_add_u32 v11, {STAT3}, v11")
        k(f"s_and_b32 s48, {sR}, 15\ns_mul_i32 s48, s48, 3\ns_lshr_b32 s49, {sR}, 4\ns_lshl_b32 s49, s49, 11")
        k("v_lshlrev_b32 v57, 4, v57\nv_lshl_add_u32 v57, v3, 12, v57\nv_add_u32 v57, s49, v57")
        k("s_add_u32 s49, s64, s51\ns_add_u32 s49, s49, s48\ns_lshl_b32 s49, s49, 14\nv_add_u32 v52, s49, v57")
        k("s_xor_b32 s49, s51, 1\ns_lshl_b32 s49, s49, 1\ns_add_u32 s49, s49, s48\ns_lshl_b32 s49, s49, 14\ns_lshl_b32 s50, s64, 13\ns_add_u32 s49, s49, s50")
        k("v_lshrrev_b32 v58, 1, v3\nv_sub_u32 v58, v58, v3\nv_lshl_add_u32 v58, v58, 12, v57\nv_and_b32 v59, 1, v3\nv_lshl_add_u32 v58, v59, 8, v58\nv_add_u32 v53, s49, v58")
        acc = lambda i, mat, a: 64 + 24 * i + 12 * mat + 4 * a
        cs = lambda mat, a: 12 + 12 * mat + 4 * a

        def reads(n):
            i, s = n // 2, n % 2
            st = 160 + 40 * (n % 2)
            w = W3S[i % 4]
            win = 1 if w >= self.WIN[1] else 0
            wo_ = w - self.WIN[win] + s * 4096
            wr = [f"ds_read_b64_tr_b16 {vr(st + 16 + 12*mat + 4*a + 2*h, 2)}, "
                  + (f"v{40 + 2*win + a} offset:{wo_ + mat*8192 + h*512}" if a < 2 else f"v{4 + 2*win + mat} offset:{wo_ + 16384 + h*512}")
                  for mat in range(2) for a in range(3) for h in range(2)]
            ar = [f"ds_read_b128 {vr(st + 4*m, 4)}, v10 offset:{A3S(i % 3) - A3S(0) + s*8192 + m*256}" for m in range(4)]
            return ar[:1] + wr[:6] + ar[1:] + wr[6:]

        def mfmas(n):
            st = 160 + 40 * (n % 2)
            o = []
            for mat in range(2):
                for m in range(4):
                    for a in range(3):
                        o.append(f"v_mfma_f32_16x16x32_bf16 {vr(acc(m, mat, a), 4)}, {vr(st + 16 + 12*mat + 4*a, 4)}, {vr(st + 4*m, 4)}, "
                                 + ("0" if n == 0 else vr(acc(m, mat, a), 4)))
            return o

        k("s_barrier")
        self.ts(25)
        self.stat_signal()
        k("s_barrier")
        self.ts(26)
        for r in reads(0):
            k(r)
        for n in range(20):
            k("s_waitcnt lgkmcnt(0)")
            if n % 2 == 1:
                k("s_barrier")
                if self.o.get("ts") == 1 and n < 19:
                    self.ts(26 + (n + 1) // 2)
            side = reads(n + 1) if n < 19 else ([f"ds_read_b128 {vr(160 + 4*m, 4)}, v11 offset:{m*256}" for m in range(4)]
                                         + [f"ds_read_b128 {vr(cs(mat, a), 4)}, v{36+a} offset:{mat*384}" for mat in range(2) for a in range(3)])
            interleave(k, mfmas(n), side)
        self.ts(36)
        k(".x_dense\ns_waitcnt lgkmcnt(0)")
        T = 176

        def pair(m, a, t, dst):
            G, U, st = acc(m, 0, a), acc(m, 1, a), 160 + 4 * m
            o = []
            for q in range(2):
                o.append(f"v_pk_fma_f32 {vr(G+2*q, 2)}, {vr(cs(0, a)+2*q, 2)}, {vr(st, 2)}, {vr(G+2*q, 2)} op_sel_hi:[1,0,1]")
            for q in range(2):
                o.append(f"v_pk_mul_f32 {vr(t+2*q, 2)}, {vr(G+2*q, 2)}, {vr(st, 2)} op_sel:[0,1] op_sel_hi:[1,1]")
            for q in range(4):
                o.append(f"v_exp_f32 v{t+q}, v{t+q}")
            for q in range(2):
                o.append(f"v_pk_fma_f32 {vr(U+2*q, 2)}, {vr(cs(1, a)+2*q, 2)}, {vr(st, 2)}, {vr(U+2*q, 2)} op_sel_hi:[1,0,1]")
            for q in range(2):
                o.append(f"v_pk_fma_f32 {vr(t+2*q, 2)}, {vr(t+2*q, 2)}, {vr(st+2, 2)}, {vr(st+2, 2)} op_sel_hi:[1,0,0]")
            for q in range(2):
                o.append(f"v_pk_mul_f32 {vr(G+2*q, 2)}, {vr(G+2*q, 2)}, {vr(U+2*q, 2)}")
            for q in range(4):
                o.append(f"v_rcp_f32 v{t+q}, v{t+q}")
            for q in range(2):
                o.append(f"v_pk_mul_f32 {vr(G+2*q, 2)}, {vr(G+2*q, 2)}, {vr(t+2*q, 2)}")
            o.append(f"v_cvt_pk_bf16_f32 v{dst}, v{G}, v{G+1}")
            o.append(f"v_cvt_pk_bf16_f32 v{dst+1}, v{G+2}, v{G+3}")
            return o

        ha = AUX[self.o.get("hhst", 1)]
        for m in range(4):
            dst, sg = 200 + 4 * m, 216 + 2 * m
            ps = [pair(m, a, T + 4 * a, dst + 2 * a if a < 2 else sg) for a in range(3)]
            for x in zip(*ps):
                for y in x:
                    k(y)
            k(f"buffer_store_dwordx4 {vr(dst, 4)}, v52, {SWS}, 0 offen offset:{m*256}{ha}")
            if m % 2:
                k(f"v_permlane16_swap_b32 v{sg-2}, v{sg}\nv_permlane16_swap_b32 v{sg-1}, v{sg+1}")
                k(f"buffer_store_dwordx4 {vr(sg-2, 4)}, v53, {SWS}, 0 offen offset:{(m-1)*256}{ha}")
        self.ts(37)
        k("s_barrier")
        self.signal(3)
        self.ts(38)
        k(f"s_cmp_ge_u32 {sR}, 30\ns_cbranch_scc1 L_fin")

    def comp_p4(self):
        k = self.k
        ns = self.o.get("ns", 6)
        k("v_add_u32 v4, 0x10000, v40\nv_add_u32 v5, 0x10000, v41")
        for p in range(ns):
            for ks in range(2):
                for a in range(2):
                    for h in range(2):
                        k(f"ds_read_b64_tr_b16 {vr(self.wreg(p, ks, ns) + 4*a + 2*h, 2)}, v{4+a} offset:{W4R[p] - 65536 + ks*4096 + h*512}")
        self.unpack_acc(240)
        k(f"v_add_u32 v44, {A4S(0) - A2B}, v44")
        k("v_lshrrev_b32 v56, 2, v1\nv_and_b32 v55, 3, v1")
        k(f"s_lshl_b32 s48, {sJ}, 7\ns_lshl_b32 s49, s64, 6\ns_add_u32 s48, s48, s49\nv_lshl_add_u32 v54, v55, 4, s48")
        k(f"v_mov_b32 v60, {OOB:#x}\ns_sub_u32 s49, s67, 1\ns_movk_i32 s50, 1280")
        for i in range(3):
            k(f"s_add_u32 s48, s66, {16*i}\nv_add_u32 v57, s48, v56\nv_lshlrev_b32 v58, 1, v57\nv_subrev_u32 v59, s49, v58")
            k(f"v_cmp_gt_u32 vcc, {sNP}, v57\nv_cndmask_b32 v58, v59, v58, vcc\nv_add_u32 v58, {sROW}, v58\nv_mad_u32_u24 v58, v58, s50, v54")
            k(f"v_cmp_gt_u32 vcc, s67, v57\nv_cndmask_b32 v{46+i}, v60, v58, vcc")
        k(f"s_mul_i32 s48, {sW}, 1280\ns_add_u32 s48, s48, {OUTST}\ns_movk_i32 s49, 80")
        k("v_lshl_add_u32 v57, v3, 3, s48\nv_mad_u32_u24 v49, v2, s49, v57\nv_lshl_add_u32 v57, v55, 4, s48\nv_mad_u32_u24 v50, v56, s49, v57")
        k(".x_sparse\ns_waitcnt lgkmcnt(0)\ns_barrier")
        self.ts(39)
        self.gemm88(24, self.w4slot, lambda s: A4S(s) - A4S(0), 40, ns=ns)
        self.ts(41)
        for i in range(3):
            for a in range(2):
                s = 64 + 8 * i + 4 * a
                k(f"v_cvt_pk_bf16_f32 v{s}, v{s}, v{s+1}\nv_cvt_pk_bf16_f32 v{s+1}, v{s+2}, v{s+3}")
            k(f"ds_write2_b64 v49, {vr(64 + 8*i, 2)}, {vr(68 + 8*i, 2)} offset0:0 offset1:4")
            k(f"ds_read_b128 {vr(88 + 4*i, 4)}, v50")
        for i in range(3):
            k(f"s_waitcnt lgkmcnt({2*(2-i)})")
            k(f"buffer_store_dwordx4 {vr(88 + 4*i, 4)}, v{46+i}, {SOUT}, 0 offen" + AUX[self.o.get("outst", 2)])
        if self.o.get("ts"):
            k("s_waitcnt vmcnt(0)")
        self.ts(42)

    def build(self):
        k = self.k
        self.prologue()
        lp1 = self.loader_p1()
        next(lp1)
        self.helper()
        self.comp_start()
        self.comp_p1()
        self.attention()
        self.comp_p2()
        self.comp_p3()
        self.comp_p4()
        k("s_branch L_fin")
        for _ in lp1:
            pass
        self.loader_rest()
        k("L_fin:")
        self.ts_flush()
        k("L_end:\ns_endpgm")
        if self.o.get("nomf"):
            k.ins = [i for i in k.ins if not (i.cls == "mfma" and i.wr == i.srcc)]
        k.finalize()
        for q in range(4):
            k.out.append(Ins(f"L_CHAIN{q}:"))
        body = k.layout(align=self.o.get("align", 1), pads=self.o.get("pads", 4))
        body = body[:body.rindex("s_endpgm") + 9]
        kn = NAME + "_kernel"
        return (HDR + "; One persistent launch: 256 workgroups (8 groups of 32), 4 MFMA waves + 4 loader waves each.\n"
                "; @launch grid=(256,1,1) block=(512,1,1) lds=163840\n"
                '.amdgcn_target "amdgcn-amd-amdhsa--gfx950"\n.text\n'
                f".globl {kn}\n.p2align 12\n.p2align 8\n.type {kn},@function\n{kn}:\n" + body +
                '.section .rodata,"a"\n.p2align 6\n'
                f".amdhsa_kernel {kn}\n  .amdhsa_next_free_vgpr 256\n  .amdhsa_next_free_sgpr 102\n  .amdhsa_accum_offset 256\n"
                "  .amdhsa_group_segment_fixed_size 0\n  .amdhsa_kernarg_size 80\n  .amdhsa_user_sgpr_count 2\n"
                "  .amdhsa_user_sgpr_kernarg_segment_ptr 1\n  .amdhsa_system_sgpr_workgroup_id_x 1\n"
                "  .amdhsa_float_denorm_mode_32 3\n.end_amdhsa_kernel\n")


if __name__ == "__main__":
    out = sys.argv[1]
    opt = {}
    for a in sys.argv[2:]:
        kk, vv = a.split("=")
        opt[kk] = int(vv)
    g = Gen(opt)
    open(out, "w").write(g.build())
    print(f"wrote {out}: {len(g.k.ins)} lines, {g.k.nops} hazard nops")
```
